```python
import torch

def _softmax(x, axis=-1):
    return torch.softmax(x, dim=axis)

def _gelu(x):
    return torch.nn.functional.gelu(x, approximate='tanh')

def _silu(x):
    return torch.nn.functional.silu(x)

def _sigmoid(x):
    return torch.sigmoid(x)

def _layernorm(x, axis=-1, eps=1e-05):
    m = x.mean(dim=axis, keepdim=True)
    v = x.var(dim=axis, keepdim=True, unbiased=False)
    return (x - m) / torch.sqrt(v + eps)

def _scatter_add(tgt, idx, src, axis=0):
    return tgt.clone().index_add_(axis, idx, src)

def _segment_sum(src, seg, n):
    out = torch.zeros((n,) + src.shape[1:], dtype=src.dtype)
    return out.index_add_(0, seg, src)

def _pad(x, pw):
    flat = tuple((v for pair in reversed(pw) for v in pair))
    return torch.nn.functional.pad(x, flat)
kernel_name = 'standalone__tree_speculative_verify_tree_attention_over_candidate_token_tree__decode'

def setup_inputs():

    _w = lambda a: (lambda t: t.to(torch.bfloat16) if t.is_floating_point() else t)(torch.as_tensor(a))
    B, Hq, Hkv, T, C, D = (1, 32, 8, 1, 32768, 128)
    tree_mask = torch.zeros((B, T, T), dtype=float)
    for b in range(B):
        parent = torch.zeros(T, dtype=torch.int64)
        for i in range(1, T):
            parent[i] = int(torch.randint(0, i, (1,)).item())
        for i in range(T):
            j = i
            tree_mask[b, i, j] = 1.0
            while j > 0:
                j = parent[j]
                tree_mask[b, i, j] = 1.0
    return {'q': _w((lambda *s: torch.randn(*s, dtype=torch.bfloat16) * 0.8)(B, Hq, T, D)), 'k_cache': _w((lambda *s: torch.randn(*s, dtype=torch.bfloat16) * 0.8)(B, Hkv, C, D)), 'v_cache': _w((lambda *s: torch.randn(*s, dtype=torch.bfloat16) * 0.05)(B, Hkv, C, D)), 'k_tree': _w((lambda *s: torch.randn(*s, dtype=torch.bfloat16) * 0.8)(B, Hkv, T, D)), 'v_tree': _w((lambda *s: torch.randn(*s, dtype=torch.bfloat16) * 0.05)(B, Hkv, T, D)), 'tree_mask': _w(tree_mask)}

def reference(q, k_cache, v_cache, k_tree, v_tree, tree_mask):
    B, Hq, T, D = q.shape
    Hkv, C = (k_cache.shape[1], k_cache.shape[2])
    rep = Hq // Hkv
    kc = (lambda x, n, axis: torch.repeat_interleave(x, n, dim=axis))(k_cache, rep, axis=1)
    vc = (lambda x, n, axis: torch.repeat_interleave(x, n, dim=axis))(v_cache, rep, axis=1)
    kt = (lambda x, n, axis: torch.repeat_interleave(x, n, dim=axis))(k_tree, rep, axis=1)
    vt = (lambda x, n, axis: torch.repeat_interleave(x, n, dim=axis))(v_tree, rep, axis=1)
    k = torch.concatenate([kc, kt], axis=2)
    v = torch.concatenate([vc, vt], axis=2)
    scale = D ** (-0.5)
    scores = torch.einsum('bhqd,bhkd->bhqk', q, k) * scale
    ctx_mask = torch.ones((B, 1, T, C), dtype=scores.dtype)
    tm = tree_mask[:, None, :, :].clone()
    full_mask = torch.concatenate([ctx_mask, tm], axis=-1)
    scores = scores + (1.0 - full_mask) * -1000000000.0
    p = _softmax(scores, axis=-1)
    return torch.einsum('bhqk,bhkd->bhqd', p, v)
```

```python
import sys, struct, math, argparse

NAME = "standalone__tree_speculative_verify_tree_attention_over_candidate_token_tree__decode"
def f2u(x): return struct.unpack("<I", struct.pack("<f", x))[0]

HEADER = """; Kernarg layout for this problem (72 bytes, ptrs only, base s[0:1]):
;   offset  24: d_in[3] k_tree  shape=(1, 8, 1, 128) dtype=bfloat16
;   offset  32: d_in[4] v_tree  shape=(1, 8, 1, 128) dtype=bfloat16
;   offset  40: d_in[5] tree_mask  shape=(1, 1, 1) dtype=bfloat16
"""
SRC, HI = 2304, 1152
LM, LL = 9216, 9280
REF = 0xc0000
NT = 16
TB = int(__import__("os").environ.get("TB", 11))
TMASK = (1 << TB) - 1
TSTEP = 0x2a5

def gen(opts):
    L = []
    A = L.append
    C = (128 ** -0.5) * math.log2(math.e)
    tb = [int(x) for x in opts.tb.split(",")]
    sb = [int(x) for x in opts.sb.split(",")]
    def toff(t): return sum(((t >> i) & 1) << b for i, b in enumerate(tb))
    def stamp(j):
        if opts.stamps:
            A(f"s_memrealtime s[{64+2*j}:{65+2*j}]")
            A("s_waitcnt lgkmcnt(0)")
    DEP = opts.dep
    RING = opts.ring
    D = "row_mask:0xf bank_mask:0xf"
    A(HEADER.rstrip())
    A("; @launch grid=(256,1,1) block=(256,1,1) lds=9472")
    A('.amdgcn_target "amdgcn-amd-amdhsa--gfx950"')
    A(".text")
    A(f".globl {NAME}_kernel")
    A(".p2align 8")
    A(f".type {NAME}_kernel,@function")
    A(f"{NAME}_kernel:")
    if opts.stamps:
        for j in range(8): A(f"s_mov_b64 s[{64+2*j}:{65+2*j}], 0")
    stamp(0)
    if opts.amp: A("s_memrealtime s[80:81]")
    A("s_load_dwordx2 s[28:29], s[0:1], 8")
    if opts.split2:
        A("s_load_dwordx2 s[4:5], s[0:1], 0")
    else:
        A("s_load_dwordx16 s[4:19], s[0:1], 0")
        A("s_load_dwordx2 s[20:21], s[0:1], 64")
    A("s_cmp_ge_u32 s2, 256")
    A("s_cbranch_scc1 L_end")
    A("v_lshrrev_b32 v2, 6, v0")
    A("v_and_b32 v5, 7, v0")
    A("v_readfirstlane_b32 s24, v2")
    A("v_bfe_u32 v4, v0, 4, 2               ; g")
    A("s_and_b32 s22, s2, 7")
    A("s_lshr_b32 s23, s2, 3                ; split")
    if opts.hshift:
        A(f"s_lshr_b32 s26, s2, {opts.hshift}")
        if opts.hmask != 7: A(f"s_and_b32 s26, s26, {opts.hmask}")
        A("s_xor_b32 s22, s22, s26")
    A("v_lshlrev_b32 v5, 8, v5")
    A("v_bfe_u32 v6, v0, 3, 1")
    A("s_lshl_b32 s25, s22, 23")
    i = 0
    while i < 5:
        n = 1
        while i + n < 5 and sb[i + n] == sb[i] + n: n += 1
        A(f"s_bfe_u32 s26, s23, 0x{(n << 16) | i:x}")
        A(f"s_lshl_b32 s26, s26, {sb[i]}")
        A("s_or_b32 s25, s25, s26")
        i += n
    A("v_lshl_add_u32 v5, v6, 6, v5")
    A("v_lshl_add_u32 v5, v4, 4, v5")
    wb = [int(x) for x in opts.wb.split(",")]
    assert sorted(wb + tb + sb) == list(range(12, 23))
    if wb[1] == wb[0] + 1:
        A(f"s_lshl_b32 s26, s24, {wb[0]}")
        A("s_or_b32 s25, s25, s26")
    else:
        for i in range(2):
            A(f"s_bfe_u32 s26, s24, 0x{0x10000 + i:x}")
            A(f"s_lshl_b32 s26, s26, {wb[i]}")
            A("s_or_b32 s25, s25, s26")
    A("s_mov_b32 s30, 0x4000000")
    A("s_mov_b32 s31, 0x20000")
    A("v_and_b32 v3, 15, v0                 ; m / n / c")
    A("v_and_b32 v1, 63, v0                 ; lane")
    A("v_lshrrev_b32 v7, 2, v3")
    A("v_lshlrev_b32 v7, 8, v7")
    A("v_bfe_u32 v6, v0, 1, 1")
    A("v_lshl_add_u32 v7, v6, 6, v7")
    A("v_lshl_add_u32 v7, v4, 4, v7")
    A("s_lshl_b32 s27, s22, 10")
    A("v_add_u32 v7, s27, v7")
    A("s_waitcnt lgkmcnt(0)")
    stamp(1)
    Q, DT, O, T, PA = 8, 24, 40, 48, 128
    NON, MRED, FT = 20, 17, 19
    G, E = 80, 88
    def areg(n): return 4 * (n % RING)
    def slot(t, r): return PA + 8 * t + 2 * r
    X = DT + 16 - 16
    def masks_block():
        A("v_and_b32 v2, 3, v3                  ; jj")
        A("v_mov_b32 v7, 0xffff")
        A("v_and_b32 v0, 1, v2")
        A("v_lshlrev_b32 v0, 4, v0")
        A("v_lshlrev_b32 v7, v0, v7")
        A("v_cmp_gt_u32 vcc, 2, v2              ; jj < 2")
        A(f"s_mov_b32 s40, 0x{f2u(C):08x}       ; scale*log2e")
        A("v_mov_b32 v0, 0xff800000")
        A("v_cndmask_b32 v2, 0, v7, vcc         ; mask0")
        A("v_cndmask_b32 v7, v7, 0, vcc         ; mask1")
    TR = 125 if opts.latetree else 16
    TQ, TK, TV, TMK = (125, 126, 18, 127) if opts.latetree else (16, 17, 18, 19)
    def tree_loads():
        A(f"global_load_dword v{TQ}, v{TQ}, s[4:5]")
        A(f"global_load_dword v{TK}, v{TK}, s[10:11]")
        A(f"global_load_ushort v{TV}, v{TV}, s[12:13]")
        A(f"global_load_ushort v{TMK}, v{TMK}, s[14:15]")
    def role_block():
        A("s_bfe_u32 s41, s23, 0x20001          ; hc")
        A(f"s_xor_b32 s43, s22, {opts.cx}               ; chead")
        A("s_lshl_b32 s42, s43, 2")
        A("s_add_u32 s42, s42, s41")
        A("s_lshl_b32 s42, s42, 8               ; (chead*4+hc)*256")
        A("s_lshl_b32 s43, s43, 8               ; chead*256")
        A(f"v_lshl_add_u32 v{TQ}, v1, 2, s42")
        A(f"v_lshl_add_u32 v{TK}, v1, 2, s43")
        A("s_and_b32 s56, s23, 1")
        A("s_lshl_b32 s56, s56, 2")
        A("s_add_u32 s56, s56, s24")
        A("s_lshl_b32 s56, s56, 5               ; chunk*32")
        A("v_and_b32 v23, 3, v1")
        A("v_lshl_add_u32 v23, v23, 2, v4")
        A("v_lshl_add_u32 v23, v23, 1, s56")
        A("v_add_u32 v18, s43, v23")
        A(f"v_mov_b32 v{TMK}, 0")
        if not opts.latetree: tree_loads()
        A(f"v_lshrrev_b32 v{Q1}, 2, v3")
        A("s_lshl_b32 s27, s24, 2")
        A(f"v_lshl_add_u32 v{Q1}, v{Q1}, 4, s27")
        A(f"v_mov_b32 v{NON}, 0")
        A("v_lshlrev_b32 v6, 10, v4")
        A("v_lshl_add_u32 v6, v3, 4, v6")
        A("s_mov_b32 s32, s8")
        A("s_mov_b32 s33, s9")
        A("s_mov_b32 s34, 0x4000000")
        A("s_mov_b32 s35, 0x20000")
        return 0 if opts.latetree else 4
    def elect(n):
        A(f"s_cmp_eq_u32 s25, {1 if opts.noelect else 0}")
        A(f"s_cbranch_scc1 L_el{n}")
        A(f"L_el{n}b:")
    def qk(t):
        d0 = DT + 8 * (t & 1); d1 = d0 + 4
        k = [areg(4 * t + i) for i in range(4)]
        A(f"v_mfma_f32_16x16x32_bf16 v[{d0}:{d0+3}], a[{k[0]}:{k[0]+3}], v[{Q}:{Q+3}], 0")
        A(f"v_mfma_f32_16x16x32_bf16 v[{d1}:{d1+3}], a[{k[2]}:{k[2]+3}], v[{Q}:{Q+3}], 0")
        A(f"v_mfma_f32_16x16x32_bf16 v[{d0}:{d0+3}], a[{k[1]}:{k[1]+3}], v[{Q+4}:{Q+7}], v[{d0}:{d0+3}]")
        A(f"v_mfma_f32_16x16x32_bf16 v[{d1}:{d1+3}], a[{k[3]}:{k[3]+3}], v[{Q+4}:{Q+7}], v[{d1}:{d1+3}]")
    def fixup(t):
        d0 = DT + 8 * (t & 1); d1 = d0 + 4
        for r in range(4):
            A(f"v_permlane32_swap_b32 v{d0+r}, v{d1+r}")
        for r in range(4):
            A(f"v_add_f32_dpp v{slot(t,r)}, v{d1+r}, v{d0+r} quad_perm:[2,3,2,3] {D}")
        A(f"v_max3_f32 v0, v0, v{slot(t,0)}, v{slot(t,1)}")
        A(f"v_max3_f32 v0, v0, v{slot(t,2)}, v{slot(t,3)}")
    def maxblock():
        A("v_mov_b32 v5, v0")
        for j in range(2): A(f"v_mov_b32 v{O+j}, 0")
        A("v_permlane16_swap_b32 v0, v5")
        A("v_max_f32 v0, v0, v5")
        A("v_mov_b32 v5, v0")
        for j in range(2, 4): A(f"v_mov_b32 v{O+j}, 0")
        A("v_permlane32_swap_b32 v0, v5")
        A("v_max_f32 v0, v0, v5")
        A("v_mul_f32 v0, s40, v0                ; m*c")
        for j in range(4, 8): A(f"v_mov_b32 v{O+j}, 0")
        A("v_mov_b32 v5, 0                      ; l")
        A("s_mov_b64 exec, 0x1111")
        A(f"ds_write_b32 v{Q1}, v0 offset:{LM}")
        A("s_mov_b64 exec, -1")
    Q1 = 96 + 28
    def treeblock():
        A("v_mov_b32 v22, 0")
        A(f"v_dot2c_f32_bf16 v22, v{TQ}, v{TK}       ; tree score partial")
        A(f"v_lshlrev_b32 v{TMK}, 16, v{TMK}")
        A(f"v_sub_f32 v{TMK}, 1.0, v{TMK}")
        A(f"v_mul_f32 v{TMK}, 0x{f2u(-1e9*math.log2(math.e)):08x}, v{TMK}")
        A("v_lshlrev_b32 v18, 16, v18           ; v_tree element as f32")
        for sh in (1, 2, 4, 8):
            A(f"v_add_f32_dpp v22, v22, v22 row_ror:{sh} {D}")
            if sh < 8: A("s_nop 1")
        for sw in ("v_permlane16_swap_b32", "v_permlane32_swap_b32"):
            A(f"v_mov_b32 v{TQ}, v22")
            A("s_nop 1")
            A(f"{sw} v22, v{TQ}")
            A(f"v_add_f32 v22, v22, v{TQ}")
        A(f"v_fma_f32 v22, v22, s40, v{TMK}         ; tree score (log2 units)")
    def softmax(t):
        X = DT
        for r in range(4):
            A(f"v_fma_f32 v{slot(t,r)}, v{slot(t,r)}, s40, -v0")
        for r in range(4):
            A(f"v_exp_f32_dpp v{slot(t,r)}, v{slot(t,r)} quad_perm:[0,1,0,1] {D}")
        for r in range(4):
            A(f"v_cvt_pk_bf16_f32 v{X+r}, v{slot(t,r)}, v{slot(t,r)}")
        A(f"v_add_f32 v{X+4}, v{slot(t,0)}, v{slot(t,1)}")
        A(f"v_add_f32 v{X+5}, v{slot(t,2)}, v{slot(t,3)}")
        for r in range(4):
            A(f"v_and_b32 v{slot(t,r)}, v{X+r}, v2")
            A(f"v_and_b32 v{slot(t,r)+1}, v{X+r}, v7")
        A(f"v_add_f32 v{X+4}, v{X+4}, v{X+5}")
        A(f"v_add_f32 v5, v5, v{X+4}")
    def pv(n):
        t, r = (n - 64) >> 2, n & 3
        a = areg(n)
        A(f"v_mfma_f32_16x16x16_bf16 v[{O}:{O+3}], v[{slot(t,r)}:{slot(t,r)+1}], a[{a}:{a+1}], v[{O}:{O+3}]")
        A(f"v_mfma_f32_16x16x16_bf16 v[{O+4}:{O+7}], v[{slot(t,r)}:{slot(t,r)+1}], a[{a+2}:{a+3}], v[{O+4}:{O+7}]")
    def setup():
        A("v_mov_b32 v0, v5")
        A(f"s_mul_i32 s27, s24, {SRC}")
        A(f"v_lshl_add_u32 v{Q+2}, v1, 4, s27")
        A("v_permlane16_swap_b32 v5, v0")
        A("v_add_f32 v5, v5, v0")
        A("v_mov_b32 v0, v5")
        A(f"v_bfe_u32 v{Q+3}, v1, 1, 1")
        A(f"v_mul_u32_u24 v{Q+3}, {HI}, v{Q+3}")
        A("v_permlane32_swap_b32 v5, v0")
        A("v_add_f32 v5, v5, v0                 ; l")
        A("s_mov_b64 exec, 0x1111")
        A(f"ds_write_b32 v{Q1}, v5 offset:{LL}")
        A("s_mov_b64 exec, -1")
        A("v_lshrrev_b32 v0, 2, v1")
        A(f"v_lshl_add_u32 v{Q+3}, v0, 4, v{Q+3}")
        A("v_and_b32 v0, 1, v1")
        A(f"v_lshl_add_u32 v{Q+3}, v0, 3, v{Q+3}")
        A("s_lshl_b32 s27, s24, 8")
        A(f"v_add_u32 v{Q+3}, s27, v{Q+3}")
        A("s_lshl_b32 s36, s22, 2")
        A("s_add_u32 s36, s36, s24              ; head*4 + w")
        A("s_lshl_b32 s27, s36, 14")
        A("s_lshl_b32 s37, s23, 6")
        A("s_add_u32 s27, s27, s37")
        A("v_lshrrev_b32 v0, 3, v1")
        A(f"v_lshl_add_u32 v{Q+6}, v0, 11, s27")
        A("v_and_b32 v0, 7, v1")
        A(f"v_lshl_add_u32 v{Q+6}, v0, 3, v{Q+6}")
        A("s_lshl_b32 s27, s36, 9")
        A("s_lshl_b32 s37, s23, 4")
        A("s_add_u32 s27, s27, s37")
        A("s_add_u32 s27, s27, 0x80000")
        A(f"v_mov_b32 v{Q+7}, s27")
        A("s_lshl_b32 s27, s42, 6")
        A("s_lshl_b32 s37, s56, 6")
        A("s_add_u32 s27, s27, s37")
        A("v_lshl_add_u32 v16, v1, 4, s27")
        A("s_lshl_b32 s27, s42, 1")
        A("s_add_u32 s27, s27, 0x80000")
        A("v_lshrrev_b32 v0, 2, v1")
        A(f"v_lshl_add_u32 v{Q+4}, v0, 4, s27")
        A("v_and_b32 v0, 1, v1")
        A(f"v_lshl_add_u32 v{Q+4}, v0, 8, v{Q+4}")
        A("v_add_u32 v23, s42, v23")
        A(f"s_mov_b32 s50, 0x{0xffffffff ^ TMASK:08x}")
        A(f"s_movk_i32 s44, 0x{TMASK:x}")
        if opts.dual:
            A(f"s_add_u32 s54, s20, 0x{opts.dual:x}")
            A("s_addc_u32 s55, s21, 0")
        A("v_lshlrev_b32 v2, 4, v4")
        A("s_lshl_b32 s27, s24, 2")
        A(f"v_add_u32 v{Q+1}, s27, v2")
        A("s_lshl_b32 s27, s24, 4")
        A(f"v_mov_b32 v{Q+5}, s27               ; w*16")
    def rendezvous():
        Y = T
        A("s_waitcnt lgkmcnt(0)")
        A("s_barrier")
        A(f"ds_read_b128 v[{Y}:{Y+3}], v2 offset:{LM}")
        A(f"ds_read_b128 v[{Y+4}:{Y+7}], v{Q+5} offset:{LM}")
        A(f"ds_read_b32 v{Y+8}, v{Q+1} offset:{LM}")
        A(f"ds_read_b32 v{Y+9}, v{Q+1} offset:{LL}")
        if opts.snon:
            A("s_mov_b32 s45, s38")
            A("s_cmp_eq_u32 s39, 0")
            A("s_cbranch_scc1 L_late")
            A("L_lateb:")
        else:
            A(f"v_readfirstlane_b32 s37, v{NON+1}")
            A("s_cmp_eq_u32 s37, 0")
            A("s_cbranch_scc1 L_late")
            A("L_lateb:")
            A(f"v_readfirstlane_b32 s45, v{NON}")
        A("s_waitcnt lgkmcnt(0)")
        A(f"v_max3_f32 v0, v{Y}, v{Y+1}, v{Y+2}")
        A(f"v_max3_f32 v{MRED}, v{Y+4}, v{Y+5}, v{Y+6}")
        A(f"v_max_f32 v0, v0, v{Y+3}")
        A(f"v_max_f32 v{MRED}, v{MRED}, v{Y+7}")
        A("v_and_b32 v0, s50, v0")
        A(f"v_and_b32 v{MRED}, s50, v{MRED}")
        A(f"v_sub_f32 v0, v{Y+8}, v0")
        A("v_exp_f32 v0, v0")
        A("s_and_b32 s46, s45, s44")
        for e in range(1, 4):
            A(f"s_add_u32 s{46+e}, s45, 0x{e*TSTEP:x}")
            A(f"s_and_b32 s{46+e}, s{46+e}, s44")
        A(f"v_mul_f32 v{Y+9}, v0, v{Y+9}")
        A("v_and_b32 v5, 1, v1")
        A(f"v_mul_u32_u24 v5, 0x{2*TSTEP:x}, v5")
        A("v_add_u32 v5, s45, v5")
        A(f"v_add_u32 v7, 0x{TSTEP:x}, v5")
        A("v_and_b32 v5, s44, v5")
        A("v_and_b32 v7, s44, v7")
        A(f"v_or_b32 v{G}, s46, v{MRED}")
        A(f"v_mov_b32 v{G+4}, s47")
        A(f"v_mov_b32 v{G+2}, s48")
        A(f"v_mov_b32 v{G+3}, s49")
        A("s_mov_b32 exec_lo, 0x00010001")
        A("s_mov_b32 exec_hi, 0x00010001")
        A(f"ds_write_b32 v{Q+1}, v{Y+9} offset:{LL}")
        A("s_mov_b64 exec, -1")
    issued = 0
    idx = {}
    consumed = set()
    done = 0
    kq = 0
    fix = 0
    sm = -2
    nv = 64
    state = {"setup": False, "non": None, "atom": None, "el3": False, "tree": None, "treed": False}
    lastmf = [0]
    def dep_at(n):
        if opts.dep2 and 64 + DEP <= n < 64 + DEP + 20: return opts.dep2
        if opts.dep0 and n < 12: return opts.dep0
        return DEP
    if opts.qat < 0:
        for x in range(2):
            A(f"global_load_dwordx4 v[{Q+4*x}:{Q+4*x+3}], v7, s[4:5] offset:{128*x}")
        issued += 2; qpos = issued
    for n in range(128 + 1):
        if n < 128:
            d = dep_at(n)
            if n >= d:
                k = issued - 1 - idx[n - d]
                A(f"s_waitcnt vmcnt({k})")
                done = max(done, issued - k)
            t, i = (n >> 2) & 15, n & 3
            if i == 0 and t: A(f"s_add_u32 s26, s25, 0x{toff(t):x}")
            soff = "s25" if t == 0 else "s26"
            assert n < RING or (n - RING) in consumed, n
            a = areg(n)
            if n < 64: A(f"buffer_load_dwordx4 a[{a}:{a+3}], v5, s[28:31], {soff} offen offset:{(i>>1)*2048+(i&1)*128} nt")
            else: A(f"buffer_load_dwordx4 a[{a}:{a+3}], v6, s[32:35], {soff} offen offset:{256*i} nt")
            idx[n] = issued; issued += 1
            if n == opts.qat:
                for x in range(2):
                    A(f"global_load_dwordx4 v[{Q+4*x}:{Q+4*x+3}], v7, s[4:5] offset:{128*x}")
                issued += 2; qpos = issued
            if n == opts.tlbat and opts.tlb:
                A(f"v_mov_b32 v{E+1}, s25")
                A(f"v_xor_b32 v{E+2}, 0x400000, v{E+1}")
                A(f"v_mov_b32 v{E+3}, 0x100000")
                A("s_mov_b64 exec, 1")
                if opts.tlb & 1: A(f"global_load_dword v{E+4}, v{E+2}, s[6:7] nt"); issued += 1
                if opts.tlb & 2: A(f"global_load_dword v{E+4}, v{E+1}, s[8:9] nt"); issued += 1
                if opts.tlb & 4: A(f"global_load_dword v{E+4}, v{E+2}, s[8:9] nt"); issued += 1
                if opts.tlb & 8: A(f"global_load_dword v{E+4}, v{E+3}, s[20:21] nt"); issued += 1
                A("s_mov_b64 exec, -1")
            if n == 2 and opts.split2:
                A("s_load_dwordx8 s[8:15], s[0:1], 16")
                A("s_load_dwordx4 s[16:19], s[0:1], 48")
                A("s_load_dwordx2 s[20:21], s[0:1], 64")
            if n == max(opts.qat, dep_at(0) - 1):
                if opts.split2: A("s_waitcnt lgkmcnt(0)")
                A(f"v_mov_b32 v{E}, 0x{REF:x}")
                A(f"v_mov_b32 v{E+5}, 1")
                A(f"v_mov_b32 v{E+6}, 0")
                A(f"v_mov_b32 v{E+7}, 0")
                elect(1)
                masks_block()
            if n == 8 and opts.amp:
                A("s_cmp_lt_u32 s2, 8")
                A("s_cselect_b32 s82, s24, 1")
                A("s_cmp_lg_u32 s82, 0")
                A("s_cbranch_scc1 L_noamp")
                A("s_lshl_b32 s82, s2, 2")
                A("s_add_u32 s82, s82, 128")
                A("v_mov_b32 v120, s82")
                A("v_mov_b32 v121, s80")
                A("s_mov_b64 exec, 1")
                A("global_store_dword v120, v121, s[18:19] sc1")
                A("s_mov_b64 exec, -1")
                A("L_noamp:")
            if n == 16:
                elect(2); state["atom"] = issued
            if state["atom"] is not None and not state["el3"] and done > state["atom"] + 1:
                elect(3); state["el3"] = True
            if n == 24:
                issued += role_block(); state["tree"] = issued
            if not opts.latetree and state["tree"] is not None and not state["treed"] and done >= state["tree"]:
                treeblock(); state["treed"] = True
            if n == 127 and opts.latetree == 1:
                tree_loads(); issued += 4; state["treed"] = True
            if opts.latetree == 2:
                if n == 26 and opts.spf:
                    A("s_cmp_lt_u32 s23, 24")
                    A("s_cbranch_scc1 L_nopf")
                    A("s_load_dword s90, s[4:5], s42")
                    A("s_load_dword s91, s[10:11], s43")
                    A("s_add_u32 s27, s43, s56")
                    A("s_load_dword s92, s[12:13], s27")
                    A("s_load_dword s93, s[14:15], 0")
                    A("s_add_u32 s27, s42, 128")
                    A("s_load_dword s94, s[4:5], s27")
                    A("s_add_u32 s27, s43, 128")
                    A("s_load_dword s95, s[10:11], s27")
                    A("L_nopf:")
                if n == opts.treeat:
                    A("s_cmp_ge_u32 s23, 24")
                    A("s_cselect_b64 exec, -1, 0")
                    tree_loads(); issued += 4; state["tree2"] = issued
                    A("s_mov_b64 exec, -1")
                elif "tree2" in state and not state["treed"] and done >= state["tree2"]:
                    treeblock(); state["treed"] = True
        else:
            rendezvous()
        if kq < 16 and (4 * kq + 3) in idx and done > idx[4 * kq + 3] and done >= qpos:
            qk(kq)
            for i in range(4): consumed.add(4 * kq + i)
            kq += 1
            if kq >= 2:
                if kq == 2: A("s_nop 3")
                fixup(kq - 2); fix = kq - 1
        elif kq == 16 and fix == 15:
            fixup(15); fix = 16
            maxblock(); sm = 0
        elif fix == 16:
            if sm < 16:
                softmax(sm); sm += 1
                if sm == 16:
                    if opts.snon:
                        A(f"s_load_dwordx2 s[38:39], s[18:19], 0 {opts.sglc}")
                        state["non"] = 0
                    else:
                        A(f"global_load_dwordx2 v[{NON}:{NON+1}], v{NON}, s[18:19] sc1")
                        issued += 1; state["non"] = issued
            elif not state["setup"]:
                setup(); state["setup"] = True
            while nv in idx and done > idx[nv] and ((nv - 64) >> 2) < sm:
                pv(nv); consumed.add(nv); nv += 1
    assert state["setup"] and state["el3"] and state["treed"] and done >= state["non"]
    while nv < 128:
        A(f"s_waitcnt vmcnt({issued - 1 - idx[nv]})")
        pv(nv); nv += 1
    stamp(2)
    A("s_cmp_lt_u32 s23, 24")
    A("s_nop 5")
    for j in range(4):
        A(f"v_pk_mul_f32 v[{O+2*j}:{O+2*j+1}], v[{O+2*j}:{O+2*j+1}], v[0:1] op_sel_hi:[1,0]")
        if j == 1: A(f"ds_write_b128 v{Q+2}, v[{O}:{O+3}]")
    A(f"ds_write_b128 v{Q+2}, v[{O+4}:{O+7}] offset:{HI}")
    A("s_waitcnt lgkmcnt(0)")
    A("s_barrier")
    for j in range(4):
        A(f"ds_read_b64 v[{T+2*j}:{T+2*j+1}], v{Q+3} offset:{SRC*j}")
    A(f"ds_read_b128 v[{T+8}:{T+11}], v{Q+5} offset:{LL}")
    A("s_waitcnt lgkmcnt(3)")
    A(f"v_pk_add_f32 v[{T}:{T+1}], v[{T}:{T+1}], v[{T+2}:{T+3}]")
    A("s_waitcnt lgkmcnt(1)")
    A(f"v_pk_add_f32 v[{T+4}:{T+5}], v[{T+4}:{T+5}], v[{T+6}:{T+7}]")
    A(f"v_pk_add_f32 v[{T}:{T+1}], v[{T}:{T+1}], v[{T+4}:{T+5}]")
    A(f"v_and_or_b32 v{T}, v{T}, s50, v5")
    A(f"v_and_or_b32 v{T+1}, v{T+1}, s50, v7")
    A(f"global_store_dwordx2 v{Q+6}, v[{T}:{T+1}], s[20:21] sc1")
    if opts.dual: A(f"global_store_dwordx2 v{Q+6}, v[{T}:{T+1}], s[54:55] sc1")
    A("s_mov_b64 exec, 1")
    A("s_waitcnt lgkmcnt(0)")
    A(f"v_pk_add_f32 v[{T+8}:{T+9}], v[{T+8}:{T+9}], v[{T+10}:{T+11}]")
    A(f"v_add_f32 v{T+8}, v{T+8}, v{T+9}")
    A(f"v_and_or_b32 v{G+1}, v{T+8}, s50, v{G+4}")
    A(f"global_store_dwordx4 v{Q+7}, v[{G}:{G+3}], s[20:21] sc1")
    if opts.dual: A(f"global_store_dwordx4 v{Q+7}, v[{G}:{G+3}], s[54:55] sc1")
    stamp(3)
    A("s_cbranch_scc1 L_fin")
    Yv = 112
    sets = [(96, "s[20:21]", ["s[58:59]", "s[60:61]", "s[62:63]"])]
    if opts.dual: sets.append((128, "s[54:55]", ["s[84:85]", "s[86:87]", "s[88:89]"]))
    NS = len(sets)
    def poll_issue(k, first):
        P, base, masks = sets[k]
        for j in range(3):
            if not first: A(f"s_mov_b64 exec, {masks[j]}")
            if j == 0: A(f"global_load_dwordx4 v[{P}:{P+3}], v{Q+4}, {base} sc1")
            else: A(f"global_load_dwordx4 v[{P+4*j}:{P+4*j+3}], v16, {base} offset:{1024*(j-1)} sc1")
        if not first: A("s_mov_b64 exec, -1")
    W0 = T + 2
    M, Lr, F, TM, TT2 = T + 8, T + 9, T + 12, T + 11, T + 10
    acc = T + 16
    def poll_check(k):
        P, base, masks = sets[k]
        for j in range(3):
            if not opts.wait0: A(f"s_waitcnt vmcnt({3*(NS-1) + 2 - j})")
            elif j == 0: A("s_waitcnt vmcnt(0)")
            for e in range(4):
                A(f"v_xor_b32 v{Yv+4*j+e}, s{46+e}, v{P+4*j+e}")
            A(f"v_or3_b32 v{W0}, v{Yv+4*j}, v{Yv+4*j+1}, v{Yv+4*j+2}")
            A(f"v_bitop3_b32 v{W0}, v{W0}, v{Yv+4*j+3}, s44 bitop3:0xa8   ; (a | b) & mask")
            if j == 0: A(f"v_readfirstlane_b32 s57, v{Yv}")
            A(f"v_cmp_ne_u32 {masks[j]}, 0, v{W0}")
        A(f"s_or_b64 s[52:53], {masks[0]}, {masks[1]}")
        A(f"v_subrev_f32 v{F}, s57, v{Yv}")
        A(f"v_subrev_f32 v{FT}, s57, v22")
        A(f"s_or_b64 s[52:53], s[52:53], {masks[2]}")
    A("s_mov_b64 exec, -1")
    if opts.ackwait: A("s_waitcnt vmcnt(0)")
    poll_issue(0, True)
    A(f"s_mov_b32 s51, {opts.spin}")
    if opts.dual:
        A(f"s_sleep {opts.gap}")
        poll_issue(1, True)
    if opts.latetree == 1:
        A(f"s_waitcnt vmcnt({3*NS})")
        treeblock()
    A("L_poll:")
    poll_check(0)
    A("s_cbranch_scc1 L_retry")
    A("L_go:")
    stamp(4)
    if opts.stamps:
        A(f"s_sub_u32 s74, {opts.spin+1}, s51")
    A(f"v_max_f32 v{M}, v{F}, v{FT}")
    A(f"v_exp_f32 v{FT}, v{FT}")
    A(f"v_exp_f32 v{F}, v{F}")
    A(f"v_cmp_lt_f32 vcc, 0x41800000, v{M}")
    A(f"v_mul_f32 v{Lr}, v{F}, v{Yv+1}")
    A("s_cbranch_vccnz L_slow")
    A("L_back4:")
    for e in range(4): A(f"v_mul_f32_dpp v{acc+e}, v{F}, v{Yv+4+e} quad_perm:[0,0,0,0] {D}")
    A(f"v_add_f32_dpp v{Lr}, v{Lr}, v{Lr} quad_perm:[1,0,3,2] {D}")
    for e in range(4): A(f"v_fmac_f32_dpp v{acc+e}, v{F}, v{Yv+8+e} quad_perm:[1,1,1,1] {D}")
    A(f"v_add_f32_dpp v{Lr}, v{Lr}, v{Lr} row_ror:4 {D}")
    A(f"v_permlane16_swap_b32 v{acc}, v{acc+1}")
    A(f"v_permlane16_swap_b32 v{acc+2}, v{acc+3}")
    A(f"v_add_f32_dpp v{Lr}, v{Lr}, v{Lr} row_ror:8 {D}")
    A(f"v_add_f32 v{acc}, v{acc}, v{acc+1}")
    A(f"v_add_f32 v{acc+2}, v{acc+2}, v{acc+3}")
    A(f"v_mov_b32 v{TM}, v{Lr}")
    A(f"v_mul_f32 v{TT2}, v{FT}, v18         ; tree term")
    A(f"v_permlane32_swap_b32 v{acc}, v{acc+2}")
    A(f"v_permlane16_swap_b32 v{Lr}, v{TM}")
    A(f"v_add_f32 v{acc}, v{acc}, v{acc+2}")
    A(f"v_add_f32 v{Lr}, v{Lr}, v{TM}")
    A(f"v_mov_b32 v{TM}, v{Lr}")
    A(f"v_add_f32_dpp v{acc}, v{acc}, v{acc} row_ror:4 {D}")
    A("s_nop 0")
    A(f"v_permlane32_swap_b32 v{Lr}, v{TM}")
    A(f"v_add_f32_dpp v{acc}, v{acc}, v{acc} row_ror:8 {D}")
    A(f"v_add_f32 v{Lr}, v{Lr}, v{TM}")
    A(f"v_add_f32 v{Lr}, v{Lr}, v{FT}")
    A(f"v_rcp_f32 v{Lr}, v{Lr}")
    A(f"v_add_f32 v{acc}, v{acc}, v{TT2}")
    A(f"v_mul_f32 v{acc}, v{Lr}, v{acc}")
    A("s_mov_b32 exec_lo, 0x000f000f")
    A("s_mov_b32 exec_hi, 0x000f000f")
    A(f"v_cvt_pk_bf16_f32 v{acc}, v{acc}, v{acc}")
    A(f"global_store_short v23, v{acc}, s[16:17]")
    stamp(7)
    if opts.amp:
        A("s_memrealtime s[82:83]")
        A("s_mov_b64 exec, -1")
        A("v_and_b32 v120, 7, v1")
        A("v_lshl_add_u32 v120, v120, 2, 64")
        A("v_add_u32 v120, 64, v120")
        A("global_load_dword v121, v120, s[18:19] sc1")
        A("s_waitcnt vmcnt(0) lgkmcnt(0)")
        for k in range(8): A(f"v_readlane_b32 s{4+k}, v121, {k}")
        A("s_min_u32 s84, s4, s5")
        for k in range(2, 8): A(f"s_min_u32 s84, s84, s{4+k}")
        A("s_max_u32 s85, s4, s5")
        for k in range(2, 8): A(f"s_max_u32 s85, s85, s{4+k}")
        if opts.amp == "T": A("s_sub_u32 s85, s82, s84"); A("s_sub_i32 s85, s85, 1500")
        elif opts.amp == "skew": A("s_sub_u32 s85, s85, s84")
        elif opts.amp == "zero": A("s_mov_b32 s85, 0")
        else: A(f"s_sub_u32 s85, s{4+int(opts.amp)}, s84")
        A("s_max_i32 s85, s85, 0")
        A("s_min_i32 s85, s85, 3000")
        A(f"s_lshl_b32 s85, s85, {opts.ampsh}")
        A("L_spin:")
        A("s_memrealtime s[86:87]")
        A("s_waitcnt lgkmcnt(0)")
        A("s_sub_u32 s86, s86, s82")
        A("s_cmp_lt_u32 s86, s85")
        A("s_cbranch_scc1 L_spin")
    A("L_fin:")
    if opts.stamps:
        A(f"s_cmp_lg_u32 s24, {opts.stampwave}")
        A("s_cbranch_scc1 L_end")
        A("s_mov_b64 exec, 1")
        A("s_lshl_b32 s26, s2, 6")
        A("s_add_u32 s26, s26, 0x200000")
        A("v_mov_b32 v0, s26")
        for j in range(4):
            for e in range(4):
                A(f"v_mov_b32 v{8+e}, s{64+4*j+e}")
            A(f"global_store_dwordx4 v0, v[8:11], s[20:21] offset:{16*j}")
            A("s_nop 1")
    A("L_end:")
    A("s_endpgm")
    def el1():
        A(f"global_load_dword v{E+4}, v{E}, s[20:21] sc1")
    def el2():
        A(f"v_add_u32 v{E+4}, 1, v{E+4}")
        A(f"global_atomic_cmpswap_x2 v[{E+2}:{E+3}], v{E+6}, v[{E+4}:{E+7}], s[18:19] sc0 sc1")
    def el3():
        A(f"v_cmp_eq_u32 vcc, 0, v{E+3}")
        A("s_nop 1")
        A(f"v_cndmask_b32 v{E+2}, v{E+2}, v{E+4}, vcc")
        A(f"global_store_dword v{E}, v{E+2}, s[20:21] sc1")
    for n, f in ((1, el1), (2, el2), (3, el3)):
        A(f"L_el{n}:")
        A("s_mov_b64 exec, 1")
        f()
        A("s_mov_b64 exec, -1")
        A(f"s_branch L_el{n}b")
    A("L_late:")
    A("s_mov_b64 exec, 1")
    if opts.cntfb:
        A(f"v_mov_b32 v{E+2}, 64")
        A(f"global_atomic_add v{E+2}, v{E+5}, s[18:19] sc1")
    el1(); A("s_waitcnt vmcnt(0)")
    el2(); A("s_waitcnt vmcnt(0)")
    el3()
    if opts.snon: A(f"v_readfirstlane_b32 s45, v{E+2}")
    else: A(f"v_mov_b32 v{NON}, v{E+2}")
    A("s_mov_b64 exec, -1")
    A("s_waitcnt vmcnt(0)")
    A("s_branch L_lateb")
    A("L_retry:")
    A("s_sub_u32 s51, s51, 1")
    A("s_cbranch_scc1 L_go")
    poll_issue(0, False)
    if opts.dual:
        poll_check(1)
        A("s_cbranch_scc0 L_go")
        poll_issue(1, False)
    A("s_branch L_poll")
    A("L_slow:")
    A(f"v_max_f32 v{M}, v{Yv}, v22")
    A("s_nop 1")
    for mod in ("quad_perm:[1,0,3,2]", "row_ror:4", "row_ror:8"):
        A(f"v_max_f32_dpp v{M}, v{M}, v{M} {mod} {D}")
        A("s_nop 1")
    for sw in ("v_permlane16_swap_b32", "v_permlane32_swap_b32"):
        A(f"v_mov_b32 v{TM}, v{M}")
        A("s_nop 1")
        A(f"{sw} v{M}, v{TM}")
        A(f"v_max_f32 v{M}, v{M}, v{TM}")
    A(f"v_sub_f32 v{F}, v{Yv}, v{M}")
    A(f"v_sub_f32 v{FT}, v22, v{M}")
    A(f"v_exp_f32 v{F}, v{F}")
    A(f"v_exp_f32 v{FT}, v{FT}")
    A("s_nop 0")
    A(f"v_mul_f32 v{Lr}, v{F}, v{Yv+1}")
    A("s_branch L_back4")
    A('.section .rodata,"a"')
    A(".p2align 6")
    A(f".amdhsa_kernel {NAME}_kernel")
    A(f"  .amdhsa_next_free_vgpr {256 + 4 * RING}")
    A("  .amdhsa_next_free_sgpr 96")
    A("  .amdhsa_accum_offset 256")
    A("  .amdhsa_group_segment_fixed_size 0")
    A("  .amdhsa_kernarg_size 72")
    A("  .amdhsa_user_sgpr_count 2")
    A("  .amdhsa_user_sgpr_kernarg_segment_ptr 1")
    A("  .amdhsa_system_sgpr_workgroup_id_x 1")
    A(".end_amdhsa_kernel")
    out = []
    for l in L:
        if l.startswith((";", ".", "L_")) or l.endswith(":") or l.startswith("  ."):
            out.append(l)
        else:
            out.append("    " + l.rstrip())
    return "\n".join(out) + "\n"

if __name__ == "__main__":
    ap = argparse.ArgumentParser()
    ap.add_argument("-o", default="/dev/stdout")
    ap.add_argument("--wb", default="12,13")
    ap.add_argument("--tb", default="18,16,22,17")
    ap.add_argument("--sb", default="14,15,21,20,19")
    ap.add_argument("--dep", type=int, default=6)
    ap.add_argument("--dep2", type=int, default=0)
    ap.add_argument("--dep0", type=int, default=0)
    ap.add_argument("--latetree", type=int, default=2)
    ap.add_argument("--snon", type=int, default=0)
    ap.add_argument("--sglc", default="")
    ap.add_argument("--cntfb", type=int, default=0)
    ap.add_argument("--tlb", type=int, default=0)
    ap.add_argument("--tlbat", type=int, default=5)
    ap.add_argument("--dual", type=lambda x: int(x, 0), default=0)
    ap.add_argument("--gap", type=int, default=5)
    ap.add_argument("--treeat", type=int, default=100)
    ap.add_argument("--spf", type=int, default=0)
    ap.add_argument("--split2", type=int, default=1)
    ap.add_argument("--noelect", type=int, default=0)
    ap.add_argument("--amp", default="")
    ap.add_argument("--ampsh", type=int, default=4)
    ap.add_argument("--wait0", type=int, default=0)
    ap.add_argument("--ring", type=int, default=28)
    ap.add_argument("--qat", type=int, default=1)
    ap.add_argument("--hshift", type=int, default=5)
    ap.add_argument("--hmask", type=int, default=6)
    ap.add_argument("--cx", type=int, default=1)
    ap.add_argument("--ackwait", type=int, default=0)
    ap.add_argument("--spin", type=int, default=20000)
    ap.add_argument("--stamps", type=int, default=0)
    ap.add_argument("--stampwave", type=int, default=0)
    o = ap.parse_args()
    open(o.o, "w").write(gen(o))
```

```python
import sys, struct, math, argparse

NAME = "standalone__tree_speculative_verify_tree_attention_over_candidate_token_tree__decode"
def f2u(x): return struct.unpack("<I", struct.pack("<f", x))[0]

HEADER = """; Kernarg layout for this problem (72 bytes, ptrs only, base s[0:1]):
;   offset  24: d_in[3] k_tree  shape=(1, 8, 1, 128) dtype=bfloat16
;   offset  32: d_in[4] v_tree  shape=(1, 8, 1, 128) dtype=bfloat16
;   offset  40: d_in[5] tree_mask  shape=(1, 1, 1) dtype=bfloat16
"""
SRC, HI = 2304, 1152
LM, LL = 9216, 9280
REF = 0x80000
NT = 16
TB = int(__import__("os").environ.get("TB", 11))
TMASK = (1 << TB) - 1
TOFF = (0, 0x2a5, 0x13b, 0x6d2)

def gen(opts):
    L = []
    A = L.append
    C = (128 ** -0.5) * math.log2(math.e)
    tb = [int(x) for x in opts.tb.split(",")]
    sb = [int(x) for x in opts.sb.split(",")]
    def toff(t): return sum(((t >> i) & 1) << b for i, b in enumerate(tb))
    def stamp(j):
        if opts.stamps:
            A(f"s_memrealtime s[{64+2*j}:{65+2*j}]")
            A("s_waitcnt lgkmcnt(0)")
    DEP = opts.dep
    RING = opts.ring
    D = "row_mask:0xf bank_mask:0xf"
    A(HEADER.rstrip())
    A("; @launch grid=(256,1,1) block=(256,1,1) lds=9472")
    A('.amdgcn_target "amdgcn-amd-amdhsa--gfx950"')
    A(".text")
    A(f".globl {NAME}_kernel")
    A(".p2align 8")
    A(f".type {NAME}_kernel,@function")
    A(f"{NAME}_kernel:")
    if opts.stamps:
        for j in range(8): A(f"s_mov_b64 s[{64+2*j}:{65+2*j}], 0")
    stamp(0)
    if opts.amp: A("s_memrealtime s[80:81]")
    A("s_load_dwordx2 s[28:29], s[0:1], 8")
    if opts.split2:
        A("s_load_dwordx2 s[4:5], s[0:1], 0")
    else:
        A("s_load_dwordx16 s[4:19], s[0:1], 0")
        A("s_load_dwordx2 s[20:21], s[0:1], 64")
    A("s_cmp_ge_u32 s2, 256")
    A("s_cbranch_scc1 L_end")
    A("v_lshrrev_b32 v2, 6, v0")
    A("v_and_b32 v5, 7, v0")
    A("v_readfirstlane_b32 s24, v2")
    A("v_bfe_u32 v4, v0, 4, 2               ; g")
    A("s_and_b32 s22, s2, 7")
    A("s_lshr_b32 s23, s2, 3                ; split")
    if opts.hshift:
        A(f"s_lshr_b32 s26, s2, {opts.hshift}")
        if opts.hmask != 7: A(f"s_and_b32 s26, s26, {opts.hmask}")
        A("s_xor_b32 s22, s22, s26")
    A("v_lshlrev_b32 v5, 8, v5")
    A("v_bfe_u32 v6, v0, 3, 1")
    A("s_lshl_b32 s25, s22, 23")
    i = 0
    while i < 5:
        n = 1
        while i + n < 5 and sb[i + n] == sb[i] + n: n += 1
        A(f"s_bfe_u32 s26, s23, 0x{(n << 16) | i:x}")
        A(f"s_lshl_b32 s26, s26, {sb[i]}")
        A("s_or_b32 s25, s25, s26")
        i += n
    A("v_lshl_add_u32 v5, v6, 6, v5")
    A("v_lshl_add_u32 v5, v4, 4, v5")
    wb = [int(x) for x in opts.wb.split(",")]
    assert sorted(wb + tb + sb) == list(range(12, 23))
    if wb[1] == wb[0] + 1:
        A(f"s_lshl_b32 s26, s24, {wb[0]}")
        A("s_or_b32 s25, s25, s26")
    else:
        for i in range(2):
            A(f"s_bfe_u32 s26, s24, 0x{0x10000 + i:x}")
            A(f"s_lshl_b32 s26, s26, {wb[i]}")
            A("s_or_b32 s25, s25, s26")
    A("s_mov_b32 s30, 0x4000000")
    A("s_mov_b32 s31, 0x20000")
    A("v_and_b32 v3, 15, v0                 ; m / n / c")
    A("v_and_b32 v1, 63, v0                 ; lane")
    A("v_lshrrev_b32 v7, 2, v3")
    A("v_lshlrev_b32 v7, 8, v7")
    A("v_bfe_u32 v6, v0, 1, 1")
    A("v_lshl_add_u32 v7, v6, 6, v7")
    A("v_lshl_add_u32 v7, v4, 4, v7")
    A("s_lshl_b32 s27, s22, 10")
    A("v_add_u32 v7, s27, v7")
    A("s_waitcnt lgkmcnt(0)")
    stamp(1)
    Q, DT, O, T, PA = 8, 24, 40, 48, 128
    NON, MRED, FT = 20, 17, 19
    G, E = 80, 88
    def areg(n): return 4 * (n % RING)
    def slot(t, r): return PA + 8 * t + 2 * r
    X = DT + 16 - 16
    def masks_block():
        A("v_and_b32 v2, 3, v3                  ; jj")
        A("v_mov_b32 v7, 0xffff")
        A("v_and_b32 v0, 1, v2")
        A("v_lshlrev_b32 v0, 4, v0")
        A("v_lshlrev_b32 v7, v0, v7")
        A("v_cmp_gt_u32 vcc, 2, v2              ; jj < 2")
        A(f"s_mov_b32 s40, 0x{f2u(C):08x}       ; scale*log2e")
        A("v_mov_b32 v0, 0xff800000")
        A("v_cndmask_b32 v2, 0, v7, vcc         ; mask0")
        A("v_cndmask_b32 v7, v7, 0, vcc         ; mask1")
    TR = 125 if opts.latetree else 16
    TQ, TK, TV, TMK = (125, 126, 18, 127) if opts.latetree else (16, 17, 18, 19)
    def tree_loads():
        A(f"global_load_dword v{TQ}, v{TQ}, s[4:5]")
        A(f"global_load_dword v{TK}, v{TK}, s[10:11]")
        A(f"global_load_ushort v{TV}, v{TV}, s[12:13]")
        A(f"global_load_ushort v{TMK}, v{TMK}, s[14:15]")
    def role_block():
        A("s_bfe_u32 s41, s23, 0x20001          ; hc")
        A(f"s_xor_b32 s43, s22, {opts.cx}               ; chead")
        A("s_lshl_b32 s42, s43, 2")
        A("s_add_u32 s42, s42, s41")
        A("s_lshl_b32 s42, s42, 8               ; (chead*4+hc)*256")
        A("s_lshl_b32 s43, s43, 8               ; chead*256")
        A(f"v_lshl_add_u32 v{TQ}, v1, 2, s42")
        A(f"v_lshl_add_u32 v{TK}, v1, 2, s43")
        A("s_and_b32 s56, s23, 1")
        A("s_lshl_b32 s56, s56, 2")
        A("s_add_u32 s56, s56, s24")
        A("s_lshl_b32 s56, s56, 5               ; chunk*32")
        A("v_and_b32 v23, 3, v1")
        A("v_lshl_add_u32 v23, v23, 2, v4")
        A("v_lshl_add_u32 v23, v23, 1, s56")
        A("v_add_u32 v18, s43, v23")
        A(f"v_mov_b32 v{TMK}, 0")
        if not opts.latetree: tree_loads()
        A(f"v_lshrrev_b32 v{Q1}, 2, v3")
        A("s_lshl_b32 s27, s24, 2")
        A(f"v_lshl_add_u32 v{Q1}, v{Q1}, 4, s27")
        A(f"v_mov_b32 v{NON}, 0")
        A("v_lshlrev_b32 v6, 10, v4")
        A("v_lshl_add_u32 v6, v3, 4, v6")
        A("s_mov_b32 s32, s8")
        A("s_mov_b32 s33, s9")
        A("s_mov_b32 s34, 0x4000000")
        A("s_mov_b32 s35, 0x20000")
        return 0 if opts.latetree else 4
    def elect(n):
        A(f"s_cmp_eq_u32 s25, {1 if opts.noelect else 0}")
        A(f"s_cbranch_scc1 L_el{n}")
        A(f"L_el{n}b:")
    def qk(t):
        d0 = DT + 8 * (t & 1); d1 = d0 + 4
        k = [areg(4 * t + i) for i in range(4)]
        A(f"v_mfma_f32_16x16x32_bf16 v[{d0}:{d0+3}], a[{k[0]}:{k[0]+3}], v[{Q}:{Q+3}], 0")
        A(f"v_mfma_f32_16x16x32_bf16 v[{d1}:{d1+3}], a[{k[2]}:{k[2]+3}], v[{Q}:{Q+3}], 0")
        A(f"v_mfma_f32_16x16x32_bf16 v[{d0}:{d0+3}], a[{k[1]}:{k[1]+3}], v[{Q+4}:{Q+7}], v[{d0}:{d0+3}]")
        A(f"v_mfma_f32_16x16x32_bf16 v[{d1}:{d1+3}], a[{k[3]}:{k[3]+3}], v[{Q+4}:{Q+7}], v[{d1}:{d1+3}]")
    def fixup(t):
        d0 = DT + 8 * (t & 1); d1 = d0 + 4
        for r in range(4):
            A(f"v_permlane32_swap_b32 v{d0+r}, v{d1+r}")
        for r in range(4):
            A(f"v_add_f32_dpp v{slot(t,r)}, v{d1+r}, v{d0+r} quad_perm:[2,3,2,3] {D}")
        A(f"v_max3_f32 v0, v0, v{slot(t,0)}, v{slot(t,1)}")
        A(f"v_max3_f32 v0, v0, v{slot(t,2)}, v{slot(t,3)}")
    def maxblock():
        A("v_mov_b32 v5, v0")
        for j in range(2): A(f"v_mov_b32 v{O+j}, 0")
        A("v_permlane16_swap_b32 v0, v5")
        A("v_max_f32 v0, v0, v5")
        A("v_mov_b32 v5, v0")
        for j in range(2, 4): A(f"v_mov_b32 v{O+j}, 0")
        A("v_permlane32_swap_b32 v0, v5")
        A("v_max_f32 v0, v0, v5")
        A("v_mul_f32 v0, s40, v0                ; m*c")
        for j in range(4, 8): A(f"v_mov_b32 v{O+j}, 0")
        A("v_mov_b32 v5, 0                      ; l")
        A("s_mov_b64 exec, 0x1111")
        A(f"ds_write_b32 v{Q1}, v0 offset:{LM}")
        A("s_mov_b64 exec, -1")
    Q1 = 96 + 28
    def treeblock():
        A("v_mov_b32 v22, 0")
        A(f"v_dot2c_f32_bf16 v22, v{TQ}, v{TK}       ; tree score partial")
        A(f"v_lshlrev_b32 v{TMK}, 16, v{TMK}")
        A(f"v_sub_f32 v{TMK}, 1.0, v{TMK}")
        A(f"v_mul_f32 v{TMK}, 0x{f2u(-1e9*math.log2(math.e)):08x}, v{TMK}")
        A("v_lshlrev_b32 v18, 16, v18           ; v_tree element as f32")
        for sh in (1, 2, 4, 8):
            A(f"v_add_f32_dpp v22, v22, v22 row_ror:{sh} {D}")
            if sh < 8: A("s_nop 1")
        for sw in ("v_permlane16_swap_b32", "v_permlane32_swap_b32"):
            A(f"v_mov_b32 v{TQ}, v22")
            A("s_nop 1")
            A(f"{sw} v22, v{TQ}")
            A(f"v_add_f32 v22, v22, v{TQ}")
        A(f"v_fma_f32 v22, v22, s40, v{TMK}         ; tree score (log2 units)")
    def softmax(t):
        X = DT
        for r in range(4):
            A(f"v_fma_f32 v{slot(t,r)}, v{slot(t,r)}, s40, -v0")
        for r in range(4):
            A(f"v_exp_f32_dpp v{slot(t,r)}, v{slot(t,r)} quad_perm:[0,1,0,1] {D}")
        for r in range(4):
            A(f"v_cvt_pk_bf16_f32 v{X+r}, v{slot(t,r)}, v{slot(t,r)}")
        A(f"v_add_f32 v{X+4}, v{slot(t,0)}, v{slot(t,1)}")
        A(f"v_add_f32 v{X+5}, v{slot(t,2)}, v{slot(t,3)}")
        for r in range(4):
            A(f"v_and_b32 v{slot(t,r)}, v{X+r}, v2")
            A(f"v_and_b32 v{slot(t,r)+1}, v{X+r}, v7")
        A(f"v_add_f32 v{X+4}, v{X+4}, v{X+5}")
        A(f"v_add_f32 v5, v5, v{X+4}")
    def pv(n):
        t, r = (n - 64) >> 2, n & 3
        a = areg(n)
        A(f"v_mfma_f32_16x16x16_bf16 v[{O}:{O+3}], v[{slot(t,r)}:{slot(t,r)+1}], a[{a}:{a+1}], v[{O}:{O+3}]")
        A(f"v_mfma_f32_16x16x16_bf16 v[{O+4}:{O+7}], v[{slot(t,r)}:{slot(t,r)+1}], a[{a+2}:{a+3}], v[{O+4}:{O+7}]")
    def setup():
        A("v_mov_b32 v0, v5")
        A(f"s_mul_i32 s27, s24, {SRC}")
        A(f"v_lshl_add_u32 v{Q+2}, v1, 4, s27")
        A("v_permlane16_swap_b32 v5, v0")
        A("v_add_f32 v5, v5, v0")
        A("v_mov_b32 v0, v5")
        A(f"v_bfe_u32 v{Q+3}, v1, 1, 1")
        A(f"v_mul_u32_u24 v{Q+3}, {HI}, v{Q+3}")
        A("v_permlane32_swap_b32 v5, v0")
        A("v_add_f32 v5, v5, v0                 ; l")
        A("s_mov_b64 exec, 0x1111")
        A(f"ds_write_b32 v{Q1}, v5 offset:{LL}")
        A("s_mov_b64 exec, -1")
        A("v_lshrrev_b32 v0, 2, v1")
        A(f"v_lshl_add_u32 v{Q+3}, v0, 4, v{Q+3}")
        A("v_and_b32 v0, 1, v1")
        A(f"v_lshl_add_u32 v{Q+3}, v0, 3, v{Q+3}")
        A("s_lshl_b32 s27, s24, 8")
        A(f"v_add_u32 v{Q+3}, s27, v{Q+3}")
        A("s_lshl_b32 s36, s22, 2")
        A("s_add_u32 s36, s36, s24              ; head*4 + w")
        A("s_lshl_b32 s27, s36, 14")
        A("s_lshl_b32 s37, s23, 6")
        A("s_add_u32 s27, s27, s37")
        A("v_lshrrev_b32 v0, 3, v1")
        A(f"v_lshl_add_u32 v{Q+6}, v0, 11, s27")
        A("v_and_b32 v0, 7, v1")
        A(f"v_lshl_add_u32 v{Q+6}, v0, 3, v{Q+6}")
        A("s_lshl_b32 s27, s36, 9")
        A("s_lshl_b32 s37, s23, 4")
        A("s_add_u32 s27, s27, s37")
        A("s_add_u32 s27, s27, 0x80000")
        A(f"v_mov_b32 v{Q+7}, s27")
        A("s_lshl_b32 s27, s42, 6")
        A("s_lshl_b32 s37, s56, 6")
        A("s_add_u32 s27, s27, s37")
        A("v_lshl_add_u32 v16, v1, 4, s27")
        A("s_lshl_b32 s27, s42, 1")
        A("s_add_u32 s27, s27, 0x80000")
        A("v_lshrrev_b32 v0, 2, v1")
        A(f"v_lshl_add_u32 v{Q+4}, v0, 4, s27")
        A("v_and_b32 v0, 1, v1")
        A(f"v_lshl_add_u32 v{Q+4}, v0, 8, v{Q+4}")
        A("v_add_u32 v23, s42, v23")
        A(f"s_mov_b32 s50, 0x{0xffffffff ^ TMASK:08x}")
        A(f"s_movk_i32 s44, 0x{TMASK:x}")
        if opts.dual:
            A(f"s_add_u32 s54, s20, 0x{opts.dual:x}")
            A("s_addc_u32 s55, s21, 0")
        A("v_lshlrev_b32 v2, 4, v4")
        A("s_lshl_b32 s27, s24, 2")
        A(f"v_add_u32 v{Q+1}, s27, v2")
        A("s_lshl_b32 s27, s24, 4")
        A(f"v_mov_b32 v{Q+5}, s27               ; w*16")
    def rendezvous():
        Y = T
        A("s_waitcnt lgkmcnt(0)")
        A("s_barrier")
        A(f"ds_read_b128 v[{Y}:{Y+3}], v2 offset:{LM}")
        A(f"ds_read_b128 v[{Y+4}:{Y+7}], v{Q+5} offset:{LM}")
        A(f"ds_read_b32 v{Y+8}, v{Q+1} offset:{LM}")
        A(f"ds_read_b128 v[{Y+12}:{Y+15}], v{Q+5} offset:{LL}")
        if opts.snon:
            A("s_mov_b32 s45, s38")
            A("s_cmp_eq_u32 s39, 0")
            A("s_cbranch_scc1 L_late")
            A("L_lateb:")
        else:
            A(f"v_readfirstlane_b32 s37, v{NON+1}")
            A("s_cmp_eq_u32 s37, 0")
            A("s_cbranch_scc1 L_late")
            A("L_lateb:")
            A(f"v_readfirstlane_b32 s45, v{NON}")
        A("s_waitcnt lgkmcnt(0)")
        A(f"v_max3_f32 v0, v{Y}, v{Y+1}, v{Y+2}")
        A(f"v_max3_f32 v{MRED}, v{Y+4}, v{Y+5}, v{Y+6}")
        A(f"v_max_f32 v0, v0, v{Y+3}")
        A(f"v_max_f32 v{MRED}, v{MRED}, v{Y+7}")
        A("v_and_b32 v0, s50, v0")
        A(f"v_and_b32 v{MRED}, s50, v{MRED}")
        A(f"v_sub_f32 v0, v{Y+8}, v0")
        for w in range(4): A(f"v_sub_f32 v{Y+4+w}, v{Y+4+w}, v{MRED}")
        A("v_exp_f32 v0, v0")
        for w in range(4): A(f"v_exp_f32 v{Y+4+w}, v{Y+4+w}")
        A("s_and_b32 s46, s45, s44")
        for e in range(1, 4):
            A(f"s_add_u32 s{46+e}, s45, 0x{TOFF[e]:x}")
            A(f"s_and_b32 s{46+e}, s{46+e}, s44")
        A(f"v_mul_f32 v{Y+9}, v{Y+4}, v{Y+12}")
        for w in range(1, 4): A(f"v_fmac_f32 v{Y+9}, v{Y+4+w}, v{Y+12+w}")
        A("s_mov_b32 vcc_lo, 0xaaaaaaaa")
        A("s_mov_b32 vcc_hi, 0xaaaaaaaa")
        A("v_mov_b32 v5, s46")
        A(f"v_mov_b32 v{G+4}, s47")
        A(f"v_mov_b32 v{G+2}, s48")
        A(f"v_mov_b32 v{G+3}, s49")
        A(f"v_or_b32 v{G}, s46, v{MRED}")
        A(f"v_cndmask_b32 v5, v5, v{G+2}, vcc")
        A(f"v_cndmask_b32 v7, v{G+4}, v{G+3}, vcc")
        A(f"v_and_or_b32 v{G+1}, v{Y+9}, s50, v{G+4}")
        A("s_mov_b64 exec, 1")
        A(f"global_store_dwordx4 v{Q+7}, v[{G}:{G+3}], s[20:21] sc1")
        A("s_mov_b64 exec, -1")
    issued = 0
    idx = {}
    consumed = set()
    done = 0
    kq = 0
    fix = 0
    sm = -2
    nv = 64
    state = {"setup": False, "non": None, "atom": None, "el3": False, "tree": None, "treed": False}
    lastmf = [0]
    def dep_at(n):
        if opts.dep2 and 64 + DEP <= n < 64 + DEP + 20: return opts.dep2
        if opts.dep0 and n < 12: return opts.dep0
        return DEP
    if opts.qat < 0:
        for x in range(2):
            A(f"global_load_dwordx4 v[{Q+4*x}:{Q+4*x+3}], v7, s[4:5] offset:{128*x}")
        issued += 2; qpos = issued
    for n in range(128 + 1):
        if n < 128:
            d = dep_at(n)
            if n >= d:
                k = issued - 1 - idx[n - d]
                A(f"s_waitcnt vmcnt({k})")
                done = max(done, issued - k)
            t, i = (n >> 2) & 15, n & 3
            if i == 0 and t: A(f"s_add_u32 s26, s25, 0x{toff(t):x}")
            soff = "s25" if t == 0 else "s26"
            assert n < RING or (n - RING) in consumed, n
            a = areg(n)
            if n < 64: A(f"buffer_load_dwordx4 a[{a}:{a+3}], v5, s[28:31], {soff} offen offset:{(i>>1)*2048+(i&1)*128} nt")
            else: A(f"buffer_load_dwordx4 a[{a}:{a+3}], v6, s[32:35], {soff} offen offset:{256*i} nt")
            idx[n] = issued; issued += 1
            if n == opts.qat:
                for x in range(2):
                    A(f"global_load_dwordx4 v[{Q+4*x}:{Q+4*x+3}], v7, s[4:5] offset:{128*x}")
                issued += 2; qpos = issued
            if n == opts.tlbat and opts.tlb:
                A(f"v_mov_b32 v{E+1}, s25")
                A(f"v_xor_b32 v{E+2}, 0x400000, v{E+1}")
                A(f"v_mov_b32 v{E+3}, 0x100000")
                A("s_mov_b64 exec, 1")
                if opts.tlb & 1: A(f"global_load_dword v{E+4}, v{E+2}, s[6:7] nt"); issued += 1
                if opts.tlb & 2: A(f"global_load_dword v{E+4}, v{E+1}, s[8:9] nt"); issued += 1
                if opts.tlb & 4: A(f"global_load_dword v{E+4}, v{E+2}, s[8:9] nt"); issued += 1
                if opts.tlb & 8: A(f"global_load_dword v{E+4}, v{E+3}, s[20:21] nt"); issued += 1
                A("s_mov_b64 exec, -1")
            if n == 2 and opts.split2:
                A("s_load_dwordx8 s[8:15], s[0:1], 16")
                A("s_load_dwordx4 s[16:19], s[0:1], 48")
                A("s_load_dwordx2 s[20:21], s[0:1], 64")
            if n == max(opts.qat, dep_at(0) - 1):
                if opts.split2: A("s_waitcnt lgkmcnt(0)")
                A(f"v_mov_b32 v{E}, 0x{REF:x}")
                A(f"v_mov_b32 v{E+5}, 1")
                A(f"v_mov_b32 v{E+6}, 0")
                A(f"v_mov_b32 v{E+7}, 0")
                elect(1)
                masks_block()
            if n == 8 and opts.amp:
                A("s_cmp_lt_u32 s2, 8")
                A("s_cselect_b32 s82, s24, 1")
                A("s_cmp_lg_u32 s82, 0")
                A("s_cbranch_scc1 L_noamp")
                A("s_lshl_b32 s82, s2, 2")
                A("s_add_u32 s82, s82, 128")
                A("v_mov_b32 v120, s82")
                A("v_mov_b32 v121, s80")
                A("s_mov_b64 exec, 1")
                A("global_store_dword v120, v121, s[18:19] sc1")
                A("s_mov_b64 exec, -1")
                A("L_noamp:")
            if n == 16:
                elect(2)
            if n == 24:
                issued += role_block(); state["tree"] = issued
            if not opts.latetree and state["tree"] is not None and not state["treed"] and done >= state["tree"]:
                treeblock(); state["treed"] = True
            if n == 127 and opts.latetree == 1:
                tree_loads(); issued += 4; state["treed"] = True
            if opts.latetree == 2:
                if n == 26 and opts.spf:
                    A("s_cmp_lt_u32 s23, 24")
                    A("s_cbranch_scc1 L_nopf")
                    A("s_load_dword s90, s[4:5], s42")
                    A("s_load_dword s91, s[10:11], s43")
                    A("s_add_u32 s27, s43, s56")
                    A("s_load_dword s92, s[12:13], s27")
                    A("s_load_dword s93, s[14:15], 0")
                    A("s_add_u32 s27, s42, 128")
                    A("s_load_dword s94, s[4:5], s27")
                    A("s_add_u32 s27, s43, 128")
                    A("s_load_dword s95, s[10:11], s27")
                    A("L_nopf:")
                if n == opts.treeat:
                    A("s_cmp_ge_u32 s23, 24")
                    A("s_cselect_b64 exec, -1, 0")
                    tree_loads(); issued += 4; state["tree2"] = issued
                    A("s_mov_b64 exec, -1")
                elif "tree2" in state and not state["treed"] and done >= state["tree2"]:
                    treeblock(); state["treed"] = True
        else:
            rendezvous()
        if kq < 16 and (4 * kq + 3) in idx and done > idx[4 * kq + 3] and done >= qpos:
            qk(kq)
            for i in range(4): consumed.add(4 * kq + i)
            kq += 1
            if kq >= 2:
                if kq == 2: A("s_nop 3")
                fixup(kq - 2); fix = kq - 1
        elif kq == 16 and fix == 15:
            fixup(15); fix = 16
            maxblock(); sm = 0
        elif fix == 16:
            if sm < 16:
                softmax(sm); sm += 1
                if sm == 16:
                    if opts.snon:
                        A(f"s_load_dwordx2 s[38:39], s[18:19], 0 {opts.sglc}")
                        state["non"] = 0
                    else:
                        A(f"global_load_dwordx2 v[{NON}:{NON+1}], v{NON}, s[18:19] sc1")
                        issued += 1; state["non"] = issued
            elif not state["setup"]:
                setup(); state["setup"] = True
            while nv in idx and done > idx[nv] and ((nv - 64) >> 2) < sm:
                pv(nv); consumed.add(nv); nv += 1
    assert state["setup"] and state["treed"] and done >= state["non"]
    while nv < 128:
        A(f"s_waitcnt vmcnt({issued - 1 - idx[nv]})")
        pv(nv); nv += 1
    stamp(2)
    A("s_cmp_lt_u32 s23, 24")
    A("s_nop 5")
    for j in range(4):
        A(f"v_pk_mul_f32 v[{O+2*j}:{O+2*j+1}], v[{O+2*j}:{O+2*j+1}], v[0:1] op_sel_hi:[1,0]")
        if j == 1: A(f"ds_write_b128 v{Q+2}, v[{O}:{O+3}]")
    A(f"ds_write_b128 v{Q+2}, v[{O+4}:{O+7}] offset:{HI}")
    A("s_waitcnt lgkmcnt(0)")
    A("s_barrier")
    for j in range(4):
        A(f"ds_read_b64 v[{T+2*j}:{T+2*j+1}], v{Q+3} offset:{SRC*j}")
    A("s_waitcnt lgkmcnt(2)")
    A(f"v_pk_add_f32 v[{T}:{T+1}], v[{T}:{T+1}], v[{T+2}:{T+3}]")
    A("s_waitcnt lgkmcnt(0)")
    A(f"v_pk_add_f32 v[{T+4}:{T+5}], v[{T+4}:{T+5}], v[{T+6}:{T+7}]")
    A(f"v_pk_add_f32 v[{T}:{T+1}], v[{T}:{T+1}], v[{T+4}:{T+5}]")
    A(f"v_and_or_b32 v{T}, v{T}, s50, v5")
    A(f"v_and_or_b32 v{T+1}, v{T+1}, s50, v7")
    A(f"global_store_dwordx2 v{Q+6}, v[{T}:{T+1}], s[20:21] sc1")
    stamp(3)
    A("s_cbranch_scc1 L_fin")
    P, Yv = 96, 112
    masks = ["s[58:59]", "s[60:61]", "s[62:63]"]
    W0 = T + 2
    M, Lr, F, TM, TT2 = T + 8, T + 9, T + 12, T + 11, T + 10
    acc = T + 16
    def poll_issue(js, first):
        for j in js:
            if not first: A(f"s_mov_b64 exec, {masks[j]}")
            if j == 0: A(f"global_load_dwordx4 v[{P}:{P+3}], v{Q+4}, s[20:21] sc1")
            else: A(f"global_load_dwordx4 v[{P+4*j}:{P+4*j+3}], v16, s[20:21] offset:{1024*(j-1)} sc1")
        if not first: A("s_mov_b64 exec, -1")
    def poll_check(j):
        A(f"s_waitcnt vmcnt({2 - j})")
        for e in range(4):
            A(f"v_xor_b32 v{Yv+4*j+e}, s{46+e}, v{P+4*j+e}")
            if j == 0 and e == 1: A(f"v_readfirstlane_b32 s57, v{Yv}")
        A(f"v_or3_b32 v{W0}, v{Yv+4*j}, v{Yv+4*j+1}, v{Yv+4*j+2}")
        A(f"v_bitop3_b32 v{W0}, v{W0}, v{Yv+4*j+3}, s44 bitop3:0xa8   ; (a | b) & mask")
        A(f"v_cmp_ne_u32 {masks[j]}, 0, v{W0}")
    poll_issue((0, 1, 2), True)
    A(f"s_mov_b32 s51, {opts.spin}")
    A("L_pollA:")
    poll_check(0)
    A(f"v_subrev_f32 v{F}, s57, v{Yv}")
    A(f"v_subrev_f32 v{FT}, s57, v22")
    A("s_cmp_lg_u64 s[58:59], 0")
    A("s_cbranch_scc1 L_retryA")
    A("L_goA:")
    A(f"v_max_f32 v{M}, v{F}, v{FT}")
    A(f"v_exp_f32 v{FT}, v{FT}")
    A(f"v_exp_f32 v{F}, v{F}")
    A(f"v_cmp_lt_f32 vcc, 0x41800000, v{M}")
    A(f"v_mul_f32 v{Lr}, v{F}, v{Yv+1}")
    A("s_cbranch_vccnz L_slow")
    A("L_back4:")
    A(f"v_mul_f32 v{TT2}, v{FT}, v18         ; tree term")
    for mod in ("quad_perm:[1,0,3,2]", "row_ror:4", "row_ror:8"):
        A(f"v_add_f32_dpp v{Lr}, v{Lr}, v{Lr} {mod} {D}")
        if mod != "row_ror:8": A("s_nop 1")
    for sw in ("v_permlane16_swap_b32", "v_permlane32_swap_b32"):
        A(f"v_mov_b32 v{TM}, v{Lr}")
        A("s_nop 1")
        A(f"{sw} v{Lr}, v{TM}")
        A(f"v_add_f32 v{Lr}, v{Lr}, v{TM}")
    A(f"v_add_f32 v{Lr}, v{Lr}, v{FT}")
    A(f"v_rcp_f32 v{Lr}, v{Lr}")
    A("L_pollB:")
    poll_check(1)
    poll_check(2)
    for e in range(4): A(f"v_mul_f32_dpp v{acc+e}, v{F}, v{Yv+4+e} quad_perm:[0,0,0,0] {D}")
    A("s_or_b64 s[52:53], s[60:61], s[62:63]")
    A("s_cbranch_scc1 L_retryB")
    A("L_go:")
    stamp(4)
    if opts.stamps:
        A(f"s_sub_u32 s74, {opts.spin+1}, s51")
    for e in range(4): A(f"v_fmac_f32_dpp v{acc+e}, v{F}, v{Yv+8+e} quad_perm:[1,1,1,1] {D}")
    A("s_nop 0")
    A(f"v_permlane16_swap_b32 v{acc}, v{acc+1}")
    A(f"v_permlane16_swap_b32 v{acc+2}, v{acc+3}")
    A(f"v_add_f32 v{acc}, v{acc}, v{acc+1}")
    A(f"v_add_f32 v{acc+2}, v{acc+2}, v{acc+3}")
    A("s_nop 1")
    A(f"v_permlane32_swap_b32 v{acc}, v{acc+2}")
    A(f"v_add_f32 v{acc}, v{acc}, v{acc+2}")
    A("s_nop 1")
    A(f"v_add_f32_dpp v{acc}, v{acc}, v{acc} row_ror:4 {D}")
    A("s_nop 1")
    A(f"v_add_f32_dpp v{acc}, v{acc}, v{acc} row_ror:8 {D}")
    A(f"v_add_f32 v{acc}, v{acc}, v{TT2}")
    A(f"v_mul_f32 v{acc}, v{Lr}, v{acc}")
    A("s_mov_b32 exec_lo, 0x000f000f")
    A("s_mov_b32 exec_hi, 0x000f000f")
    A(f"v_cvt_pk_bf16_f32 v{acc}, v{acc}, v{acc}")
    A(f"global_store_short v23, v{acc}, s[16:17]")
    stamp(7)
    if opts.amp:
        A("s_memrealtime s[82:83]")
        A("s_mov_b64 exec, -1")
        A("v_and_b32 v120, 7, v1")
        A("v_lshl_add_u32 v120, v120, 2, 64")
        A("v_add_u32 v120, 64, v120")
        A("global_load_dword v121, v120, s[18:19] sc1")
        A("s_waitcnt vmcnt(0) lgkmcnt(0)")
        for k in range(8): A(f"v_readlane_b32 s{4+k}, v121, {k}")
        A("s_min_u32 s84, s4, s5")
        for k in range(2, 8): A(f"s_min_u32 s84, s84, s{4+k}")
        A("s_max_u32 s85, s4, s5")
        for k in range(2, 8): A(f"s_max_u32 s85, s85, s{4+k}")
        if opts.amp == "T": A("s_sub_u32 s85, s82, s84"); A("s_sub_i32 s85, s85, 1500")
        elif opts.amp == "skew": A("s_sub_u32 s85, s85, s84")
        elif opts.amp == "zero": A("s_mov_b32 s85, 0")
        else: A(f"s_sub_u32 s85, s{4+int(opts.amp)}, s84")
        A("s_max_i32 s85, s85, 0")
        A("s_min_i32 s85, s85, 3000")
        A(f"s_lshl_b32 s85, s85, {opts.ampsh}")
        A("L_spin:")
        A("s_memrealtime s[86:87]")
        A("s_waitcnt lgkmcnt(0)")
        A("s_sub_u32 s86, s86, s82")
        A("s_cmp_lt_u32 s86, s85")
        A("s_cbranch_scc1 L_spin")
    A("L_fin:")
    if opts.stamps:
        A(f"s_cmp_lg_u32 s24, {opts.stampwave}")
        A("s_cbranch_scc1 L_end")
        A("s_mov_b64 exec, 1")
        A("s_lshl_b32 s26, s2, 6")
        A("s_add_u32 s26, s26, 0x200000")
        A("v_mov_b32 v0, s26")
        for j in range(4):
            for e in range(4):
                A(f"v_mov_b32 v{8+e}, s{64+4*j+e}")
            A(f"global_store_dwordx4 v0, v[8:11], s[20:21] offset:{16*j}")
            A("s_nop 1")
    A("L_end:")
    A("s_endpgm")
    def el1():
        A(f"global_load_dword v{E+4}, v{E}, s[20:21] sc1")
    def el2(ret):
        A(f"v_add_u32 v{E+4}, 1, v{E+4}")
        if ret: A(f"global_atomic_cmpswap_x2 v[{E+2}:{E+3}], v{E+6}, v[{E+4}:{E+7}], s[18:19] sc0 sc1")
        else: A(f"global_atomic_cmpswap_x2 v{E+6}, v[{E+4}:{E+7}], s[18:19] sc1")
    for n, f in ((1, el1), (2, lambda: el2(False))):
        A(f"L_el{n}:")
        A("s_mov_b64 exec, 1")
        f()
        A("s_mov_b64 exec, -1")
        A(f"s_branch L_el{n}b")
    A("L_late:")
    A("s_mov_b64 exec, 1")
    if opts.cntfb:
        A(f"v_mov_b32 v{E+2}, 64")
        A(f"global_atomic_add v{E+2}, v{E+5}, s[18:19] sc1")
    el1(); A("s_waitcnt vmcnt(0)")
    el2(True); A("s_waitcnt vmcnt(0)")
    A(f"v_cmp_eq_u32 vcc, 0, v{E+3}")
    A("s_nop 1")
    A(f"v_cndmask_b32 v{E+2}, v{E+2}, v{E+4}, vcc")
    if opts.snon: A("s_nop 0"); A(f"v_readfirstlane_b32 s45, v{E+2}")
    else: A(f"v_mov_b32 v{NON}, v{E+2}")
    A("s_mov_b64 exec, -1")
    A("s_branch L_lateb")
    A("L_retryA:")
    A("s_sub_u32 s51, s51, 1")
    A("s_cbranch_scc1 L_goA")
    poll_check(1)
    poll_check(2)
    poll_issue((0, 1, 2), False)
    A("s_branch L_pollA")
    A("L_retryB:")
    A("s_sub_u32 s51, s51, 1")
    A("s_cbranch_scc1 L_go")
    poll_issue((1, 2), False)
    A("s_branch L_pollB")
    A("L_slow:")
    A(f"v_max_f32 v{M}, v{Yv}, v22")
    A("s_nop 1")
    for mod in ("quad_perm:[1,0,3,2]", "row_ror:4", "row_ror:8"):
        A(f"v_max_f32_dpp v{M}, v{M}, v{M} {mod} {D}")
        A("s_nop 1")
    for sw in ("v_permlane16_swap_b32", "v_permlane32_swap_b32"):
        A(f"v_mov_b32 v{TM}, v{M}")
        A("s_nop 1")
        A(f"{sw} v{M}, v{TM}")
        A(f"v_max_f32 v{M}, v{M}, v{TM}")
    A(f"v_sub_f32 v{F}, v{Yv}, v{M}")
    A(f"v_sub_f32 v{FT}, v22, v{M}")
    A(f"v_exp_f32 v{F}, v{F}")
    A(f"v_exp_f32 v{FT}, v{FT}")
    A("s_nop 0")
    A(f"v_mul_f32 v{Lr}, v{F}, v{Yv+1}")
    A("s_branch L_back4")
    A('.section .rodata,"a"')
    A(".p2align 6")
    A(f".amdhsa_kernel {NAME}_kernel")
    A(f"  .amdhsa_next_free_vgpr {256 + 4 * RING}")
    A("  .amdhsa_next_free_sgpr 96")
    A("  .amdhsa_accum_offset 256")
    A("  .amdhsa_group_segment_fixed_size 0")
    A("  .amdhsa_kernarg_size 72")
    A("  .amdhsa_user_sgpr_count 2")
    A("  .amdhsa_user_sgpr_kernarg_segment_ptr 1")
    A("  .amdhsa_system_sgpr_workgroup_id_x 1")
    A(".end_amdhsa_kernel")
    out = []
    for l in L:
        if l.startswith((";", ".", "L_")) or l.endswith(":") or l.startswith("  ."):
            out.append(l)
        else:
            out.append("    " + l.rstrip())
    return "\n".join(out) + "\n"

if __name__ == "__main__":
    ap = argparse.ArgumentParser()
    ap.add_argument("-o", default="/dev/stdout")
    ap.add_argument("--wb", default="12,13")
    ap.add_argument("--tb", default="18,16,22,17")
    ap.add_argument("--sb", default="14,15,21,20,19")
    ap.add_argument("--dep", type=int, default=6)
    ap.add_argument("--dep2", type=int, default=0)
    ap.add_argument("--dep0", type=int, default=0)
    ap.add_argument("--latetree", type=int, default=2)
    ap.add_argument("--snon", type=int, default=0)
    ap.add_argument("--sglc", default="")
    ap.add_argument("--cntfb", type=int, default=0)
    ap.add_argument("--tlb", type=int, default=0)
    ap.add_argument("--tlbat", type=int, default=5)
    ap.add_argument("--dual", type=lambda x: int(x, 0), default=0)
    ap.add_argument("--gap", type=int, default=5)
    ap.add_argument("--treeat", type=int, default=100)
    ap.add_argument("--spf", type=int, default=0)
    ap.add_argument("--split2", type=int, default=1)
    ap.add_argument("--noelect", type=int, default=0)
    ap.add_argument("--amp", default="")
    ap.add_argument("--ampsh", type=int, default=4)
    ap.add_argument("--wait0", type=int, default=0)
    ap.add_argument("--thr", type=int, default=0)
    ap.add_argument("--psleep", type=int, default=0)
    ap.add_argument("--sthr", type=int, default=16)
    ap.add_argument("--ring", type=int, default=28)
    ap.add_argument("--qat", type=int, default=1)
    ap.add_argument("--hshift", type=int, default=5)
    ap.add_argument("--hmask", type=int, default=6)
    ap.add_argument("--cx", type=int, default=1)
    ap.add_argument("--ackwait", type=int, default=0)
    ap.add_argument("--spin", type=int, default=20000)
    ap.add_argument("--stamps", type=int, default=0)
    ap.add_argument("--stampwave", type=int, default=0)
    o = ap.parse_args()
    open(o.o, "w").write(gen(o))
```

```python
import sys, struct, math, argparse

NAME = "standalone__tree_speculative_verify_tree_attention_over_candidate_token_tree__decode"
def f2u(x): return struct.unpack("<I", struct.pack("<f", x))[0]

HEADER = """; Kernarg layout for this problem (72 bytes, ptrs only, base s[0:1]):
;   offset  24: d_in[3] k_tree  shape=(1, 8, 1, 128) dtype=bfloat16
;   offset  32: d_in[4] v_tree  shape=(1, 8, 1, 128) dtype=bfloat16
;   offset  40: d_in[5] tree_mask  shape=(1, 1, 1) dtype=bfloat16
"""
SRC, HI = 2304, 1152
LM, LL = 9216, 9280
REF = 0x80000
NT = 16
TB = int(__import__("os").environ.get("TB", 11))
TMASK = (1 << TB) - 1
TOFF = (0, 0x2a5, 0x13b, 0x6d2)

def gen(opts):
    L = []
    A = L.append
    C = (128 ** -0.5) * math.log2(math.e)
    tb = [int(x) for x in opts.tb.split(",")]
    sb = [int(x) for x in opts.sb.split(",")]
    def toff(t): return sum(((t >> i) & 1) << b for i, b in enumerate(tb))
    def stamp(j):
        if opts.stamps:
            A(f"s_memrealtime s[{64+2*j}:{65+2*j}]")
            A("s_waitcnt lgkmcnt(0)")
    DEP = opts.dep
    RING = opts.ring
    D = "row_mask:0xf bank_mask:0xf"
    A(HEADER.rstrip())
    A("; @launch grid=(256,1,1) block=(256,1,1) lds=9472")
    A('.amdgcn_target "amdgcn-amd-amdhsa--gfx950"')
    A(".text")
    A(f".globl {NAME}_kernel")
    A(".p2align 8")
    A(f".type {NAME}_kernel,@function")
    A(f"{NAME}_kernel:")
    if opts.stamps:
        for j in range(8): A(f"s_mov_b64 s[{64+2*j}:{65+2*j}], 0")
    stamp(0)
    if opts.amp: A("s_memrealtime s[80:81]")
    A("s_load_dwordx2 s[28:29], s[0:1], 8")
    if opts.split2:
        A("s_load_dwordx2 s[4:5], s[0:1], 0")
    else:
        A("s_load_dwordx16 s[4:19], s[0:1], 0")
        A("s_load_dwordx2 s[20:21], s[0:1], 64")
    A("s_cmp_ge_u32 s2, 256")
    A("s_cbranch_scc1 L_end")
    A("v_lshrrev_b32 v2, 6, v0")
    A("v_and_b32 v5, 7, v0")
    A("v_readfirstlane_b32 s24, v2")
    A("v_bfe_u32 v4, v0, 4, 2               ; g")
    A("s_and_b32 s22, s2, 7")
    A("s_lshr_b32 s23, s2, 3                ; split")
    if opts.hshift:
        A(f"s_lshr_b32 s26, s2, {opts.hshift}")
        if opts.hmask != 7: A(f"s_and_b32 s26, s26, {opts.hmask}")
        A("s_xor_b32 s22, s22, s26")
    if opts.kperm:
        A("v_bfe_u32 v6, v0, 2, 1")
        A("v_and_b32 v5, 3, v0")
        A("v_lshl_add_u32 v5, v5, 2, v6")
    A("v_lshlrev_b32 v5, 8, v5")
    A("v_bfe_u32 v6, v0, 3, 1")
    A("s_lshl_b32 s25, s22, 23")
    i = 0
    while i < 5:
        n = 1
        while i + n < 5 and sb[i + n] == sb[i] + n: n += 1
        A(f"s_bfe_u32 s26, s23, 0x{(n << 16) | i:x}")
        A(f"s_lshl_b32 s26, s26, {sb[i]}")
        A("s_or_b32 s25, s25, s26")
        i += n
    A("v_lshl_add_u32 v5, v6, 6, v5")
    A("v_lshl_add_u32 v5, v4, 4, v5")
    wb = [int(x) for x in opts.wb.split(",")]
    assert sorted(wb + tb + sb) == list(range(12, 23))
    if wb[1] == wb[0] + 1:
        A(f"s_lshl_b32 s26, s24, {wb[0]}")
        A("s_or_b32 s25, s25, s26")
    else:
        for i in range(2):
            A(f"s_bfe_u32 s26, s24, 0x{0x10000 + i:x}")
            A(f"s_lshl_b32 s26, s26, {wb[i]}")
            A("s_or_b32 s25, s25, s26")
    A("s_mov_b32 s30, 0x4000000")
    A("s_mov_b32 s31, 0x20000")
    A("v_and_b32 v3, 15, v0                 ; m / n / c")
    A("v_and_b32 v1, 63, v0                 ; lane")
    A("v_lshrrev_b32 v7, 2, v3")
    A("v_lshlrev_b32 v7, 8, v7")
    A("v_bfe_u32 v6, v0, 1, 1")
    A("v_lshl_add_u32 v7, v6, 6, v7")
    A("v_lshl_add_u32 v7, v4, 4, v7")
    A("s_lshl_b32 s27, s22, 10")
    A("v_add_u32 v7, s27, v7")
    A("s_waitcnt lgkmcnt(0)")
    stamp(1)
    if opts.amp == "karg": A("s_memrealtime s[78:79]")
    Q, DT, O, T, PA = 8, 24, 40, 48, 128
    NON, MRED, FT = 20, 17, 19
    G, E = 80, 88
    def areg(n): return 4 * (n % RING)
    KORD = [int(x) for x in opts.kord.split(",")]
    KG = len(KORD) // 4
    KSEQ = [(g * KG + (e >> 2), e & 3) for g in range(16 // KG) for e in KORD]
    KPOS = {tj: n for n, tj in enumerate(KSEQ)}
    VORD = [int(x) for x in opts.vord.split(",")]
    VG = len(VORD) // 4
    VSEQ = [(g * VG + (e >> 2), e & 3) for g in range(16 // VG) for e in VORD]
    def kimm(j): return (j >> 1) * (512 if opts.kperm else 2048) + (j & 1) * 128
    def slot(t, r): return PA + 8 * t + 2 * r
    X = DT + 16 - 16
    def masks_block():
        A("v_and_b32 v2, 3, v3                  ; jj")
        A("v_mov_b32 v7, 0xffff")
        A("v_and_b32 v0, 1, v2")
        A("v_lshlrev_b32 v0, 4, v0")
        A("v_lshlrev_b32 v7, v0, v7")
        A("v_cmp_gt_u32 vcc, 2, v2              ; jj < 2")
        A(f"s_mov_b32 s40, 0x{f2u(C):08x}       ; scale*log2e")
        A("v_mov_b32 v0, 0xff800000")
        A("v_cndmask_b32 v2, 0, v7, vcc         ; mask0")
        A("v_cndmask_b32 v7, v7, 0, vcc         ; mask1")
    TR = 125 if opts.latetree else 16
    TQ, TK, TV, TMK = (125, 126, 18, 127) if opts.latetree else (16, 17, 18, 19)
    def tree_loads():
        A(f"global_load_dword v{TQ}, v{TQ}, s[4:5]")
        A(f"global_load_dword v{TK}, v{TK}, s[10:11]")
        A(f"global_load_ushort v{TV}, v{TV}, s[12:13]")
        A(f"global_load_ushort v{TMK}, v{TMK}, s[14:15]")
    def role_block():
        A("s_bfe_u32 s41, s23, 0x20001          ; hc")
        A(f"s_xor_b32 s43, s22, {opts.cx}               ; chead")
        A("s_lshl_b32 s42, s43, 2")
        A("s_add_u32 s42, s42, s41")
        A("s_lshl_b32 s42, s42, 8               ; (chead*4+hc)*256")
        A("s_lshl_b32 s43, s43, 8               ; chead*256")
        A(f"v_lshl_add_u32 v{TQ}, v1, 2, s42")
        A(f"v_lshl_add_u32 v{TK}, v1, 2, s43")
        A("s_and_b32 s56, s23, 1")
        A("s_lshl_b32 s56, s56, 2")
        A("s_add_u32 s56, s56, s24")
        A("s_lshl_b32 s56, s56, 5               ; chunk*32")
        A("v_and_b32 v23, 3, v1")
        A("v_lshl_add_u32 v23, v23, 2, v4")
        A("v_lshl_add_u32 v23, v23, 1, s56")
        A("v_add_u32 v18, s43, v23")
        A(f"v_mov_b32 v{TMK}, 0")
        if not opts.latetree: tree_loads()
        A(f"v_lshrrev_b32 v{Q1}, 2, v3")
        A("s_lshl_b32 s27, s24, 2")
        A(f"v_lshl_add_u32 v{Q1}, v{Q1}, 4, s27")
        A(f"v_mov_b32 v{NON}, 0")
        if opts.kperm:
            A("v_lshlrev_b32 v6, 4, v1")
        else:
            A("v_lshlrev_b32 v6, 10, v4")
            A("v_lshl_add_u32 v6, v3, 4, v6")
        A("s_mov_b32 s32, s8")
        A("s_mov_b32 s33, s9")
        A("s_mov_b32 s34, 0x4000000")
        A("s_mov_b32 s35, 0x20000")
        return 0 if opts.latetree else 4
    def elect(n):
        A(f"s_cmp_eq_u32 s25, {1 if opts.noelect else 0}")
        A(f"s_cbranch_scc1 L_el{n}")
        A(f"L_el{n}b:")
    def qk(t):
        d0 = DT + 8 * (t & 1); d1 = d0 + 4
        k = [areg(KPOS[(t, i)]) for i in range(4)]
        A(f"v_mfma_f32_16x16x32_bf16 v[{d0}:{d0+3}], a[{k[0]}:{k[0]+3}], v[{Q}:{Q+3}], 0")
        A(f"v_mfma_f32_16x16x32_bf16 v[{d1}:{d1+3}], a[{k[2]}:{k[2]+3}], v[{Q}:{Q+3}], 0")
        A(f"v_mfma_f32_16x16x32_bf16 v[{d0}:{d0+3}], a[{k[1]}:{k[1]+3}], v[{Q+4}:{Q+7}], v[{d0}:{d0+3}]")
        A(f"v_mfma_f32_16x16x32_bf16 v[{d1}:{d1+3}], a[{k[3]}:{k[3]+3}], v[{Q+4}:{Q+7}], v[{d1}:{d1+3}]")
    def fixup(t):
        d0 = DT + 8 * (t & 1); d1 = d0 + 4
        for r in range(4):
            A(f"v_permlane32_swap_b32 v{d0+r}, v{d1+r}")
        for r in range(4):
            A(f"v_add_f32_dpp v{slot(t,r)}, v{d1+r}, v{d0+r} quad_perm:[2,3,2,3] {D}")
        A(f"v_max3_f32 v0, v0, v{slot(t,0)}, v{slot(t,1)}")
        A(f"v_max3_f32 v0, v0, v{slot(t,2)}, v{slot(t,3)}")
    def maxblock():
        A("v_mov_b32 v5, v0")
        for j in range(2): A(f"v_mov_b32 v{O+j}, 0")
        A("v_permlane16_swap_b32 v0, v5")
        A("v_max_f32 v0, v0, v5")
        A("v_mov_b32 v5, v0")
        for j in range(2, 4): A(f"v_mov_b32 v{O+j}, 0")
        A("v_permlane32_swap_b32 v0, v5")
        A("v_max_f32 v0, v0, v5")
        A("v_mul_f32 v0, s40, v0                ; m*c")
        for j in range(4, 8): A(f"v_mov_b32 v{O+j}, 0")
        A("v_mov_b32 v5, 0                      ; l")
        A("s_mov_b64 exec, 0x1111")
        A(f"ds_write_b32 v{Q1}, v0 offset:{LM}")
        A("s_mov_b64 exec, -1")
    Q1 = 96 + 28
    def treeblock():
        A("v_mov_b32 v22, 0")
        A(f"v_dot2c_f32_bf16 v22, v{TQ}, v{TK}       ; tree score partial")
        A(f"v_lshlrev_b32 v{TMK}, 16, v{TMK}")
        A(f"v_sub_f32 v{TMK}, 1.0, v{TMK}")
        A(f"v_mul_f32 v{TMK}, 0x{f2u(-1e9*math.log2(math.e)):08x}, v{TMK}")
        A("v_lshlrev_b32 v18, 16, v18           ; v_tree element as f32")
        for sh in (1, 2, 4, 8):
            A(f"v_add_f32_dpp v22, v22, v22 row_ror:{sh} {D}")
            if sh < 8: A("s_nop 1")
        for sw in ("v_permlane16_swap_b32", "v_permlane32_swap_b32"):
            A(f"v_mov_b32 v{TQ}, v22")
            A("s_nop 1")
            A(f"{sw} v22, v{TQ}")
            A(f"v_add_f32 v22, v22, v{TQ}")
        A(f"v_fma_f32 v22, v22, s40, v{TMK}         ; tree score (log2 units)")
    def softmax(t):
        X = DT
        for r in range(4):
            A(f"v_fma_f32 v{slot(t,r)}, v{slot(t,r)}, s40, -v0")
        for r in range(4):
            A(f"v_exp_f32_dpp v{slot(t,r)}, v{slot(t,r)} quad_perm:[0,1,0,1] {D}")
        for r in range(4):
            A(f"v_cvt_pk_bf16_f32 v{X+r}, v{slot(t,r)}, v{slot(t,r)}")
        A(f"v_add_f32 v{X+4}, v{slot(t,0)}, v{slot(t,1)}")
        A(f"v_add_f32 v{X+5}, v{slot(t,2)}, v{slot(t,3)}")
        for r in range(4):
            A(f"v_and_b32 v{slot(t,r)}, v{X+r}, v2")
            A(f"v_and_b32 v{slot(t,r)+1}, v{X+r}, v7")
        A(f"v_add_f32 v{X+4}, v{X+4}, v{X+5}")
        A(f"v_add_f32 v5, v5, v{X+4}")
    def pv(n):
        t, r = VSEQ[n - 64]
        a = areg(n)
        A(f"v_mfma_f32_16x16x16_bf16 v[{O}:{O+3}], v[{slot(t,r)}:{slot(t,r)+1}], a[{a}:{a+1}], v[{O}:{O+3}]")
        A(f"v_mfma_f32_16x16x16_bf16 v[{O+4}:{O+7}], v[{slot(t,r)}:{slot(t,r)+1}], a[{a+2}:{a+3}], v[{O+4}:{O+7}]")
    def setup():
        A("v_mov_b32 v0, v5")
        A(f"s_mul_i32 s27, s24, {SRC}")
        A(f"v_lshl_add_u32 v{Q+2}, v1, 4, s27")
        A("v_permlane16_swap_b32 v5, v0")
        A("v_add_f32 v5, v5, v0")
        A("v_mov_b32 v0, v5")
        A(f"v_bfe_u32 v{Q+3}, v1, 1, 1")
        A(f"v_mul_u32_u24 v{Q+3}, {HI}, v{Q+3}")
        A("v_permlane32_swap_b32 v5, v0")
        A("v_add_f32 v5, v5, v0                 ; l")
        A("s_mov_b64 exec, 0x1111")
        A(f"ds_write_b32 v{Q1}, v5 offset:{LL}")
        A("s_mov_b64 exec, -1")
        A("v_lshrrev_b32 v0, 2, v1")
        A(f"v_lshl_add_u32 v{Q+3}, v0, 4, v{Q+3}")
        A("v_and_b32 v0, 1, v1")
        A(f"v_lshl_add_u32 v{Q+3}, v0, 3, v{Q+3}")
        A("s_lshl_b32 s27, s24, 8")
        A(f"v_add_u32 v{Q+3}, s27, v{Q+3}")
        A("s_lshl_b32 s36, s22, 2")
        A("s_add_u32 s36, s36, s24              ; head*4 + w")
        A("s_lshl_b32 s27, s36, 14")
        A("s_lshl_b32 s37, s23, 6")
        A("s_add_u32 s27, s27, s37")
        A("v_lshrrev_b32 v0, 3, v1")
        A(f"v_lshl_add_u32 v{Q+6}, v0, 11, s27")
        A("v_and_b32 v0, 7, v1")
        A(f"v_lshl_add_u32 v{Q+6}, v0, 3, v{Q+6}")
        A("s_lshl_b32 s27, s36, 9")
        A("s_lshl_b32 s37, s23, 4")
        A("s_add_u32 s27, s27, s37")
        A("s_add_u32 s27, s27, 0x80000")
        A(f"v_mov_b32 v{Q+7}, s27")
        A("s_lshl_b32 s27, s42, 6")
        A("s_lshl_b32 s37, s56, 6")
        A("s_add_u32 s27, s27, s37")
        A("v_lshl_add_u32 v16, v1, 4, s27")
        A("s_lshl_b32 s27, s42, 1")
        A("s_add_u32 s27, s27, 0x80000")
        A("v_lshrrev_b32 v0, 2, v1")
        A(f"v_lshl_add_u32 v{Q+4}, v0, 4, s27")
        A("v_and_b32 v0, 1, v1")
        A(f"v_lshl_add_u32 v{Q+4}, v0, 8, v{Q+4}")
        A("v_add_u32 v23, s42, v23")
        A(f"s_mov_b32 s50, 0x{0xffffffff ^ TMASK:08x}")
        A(f"s_movk_i32 s44, 0x{TMASK:x}")
        if opts.dual:
            A(f"s_add_u32 s54, s20, 0x{opts.dual:x}")
            A("s_addc_u32 s55, s21, 0")
        A("v_lshlrev_b32 v2, 4, v4")
        A("s_lshl_b32 s27, s24, 2")
        A(f"v_add_u32 v{Q+1}, s27, v2")
        A("s_lshl_b32 s27, s24, 4")
        A(f"v_mov_b32 v{Q+5}, s27               ; w*16")
    def rendezvous():
        Y = T
        A("s_waitcnt lgkmcnt(0)")
        A("s_barrier")
        A(f"ds_read_b128 v[{Y}:{Y+3}], v2 offset:{LM}")
        A(f"ds_read_b128 v[{Y+4}:{Y+7}], v{Q+5} offset:{LM}")
        A(f"ds_read_b32 v{Y+8}, v{Q+1} offset:{LM}")
        A(f"ds_read_b128 v[{Y+12}:{Y+15}], v{Q+5} offset:{LL}")
        if opts.snon:
            A("s_mov_b32 s45, s38")
            A("s_cmp_eq_u32 s39, 0")
            A("s_cbranch_scc1 L_late")
            A("L_lateb:")
        else:
            A(f"v_readfirstlane_b32 s37, v{NON+1}")
            A("s_cmp_eq_u32 s37, 0")
            A("s_cbranch_scc1 L_late")
            A("L_lateb:")
            A(f"v_readfirstlane_b32 s45, v{NON}")
        A("s_waitcnt lgkmcnt(0)")
        A(f"v_max3_f32 v0, v{Y}, v{Y+1}, v{Y+2}")
        A(f"v_max3_f32 v{MRED}, v{Y+4}, v{Y+5}, v{Y+6}")
        A(f"v_max_f32 v0, v0, v{Y+3}")
        A(f"v_max_f32 v{MRED}, v{MRED}, v{Y+7}")
        A("v_and_b32 v0, s50, v0")
        A(f"v_and_b32 v{MRED}, s50, v{MRED}")
        A(f"v_sub_f32 v0, v{Y+8}, v0")
        for w in range(4): A(f"v_sub_f32 v{Y+4+w}, v{Y+4+w}, v{MRED}")
        A("v_exp_f32 v0, v0")
        for w in range(4): A(f"v_exp_f32 v{Y+4+w}, v{Y+4+w}")
        A("s_and_b32 s46, s45, s44")
        for e in range(1, 4):
            A(f"s_add_u32 s{46+e}, s45, 0x{TOFF[e]:x}")
            A(f"s_and_b32 s{46+e}, s{46+e}, s44")
        A(f"v_mul_f32 v{Y+9}, v{Y+4}, v{Y+12}")
        for w in range(1, 4): A(f"v_fmac_f32 v{Y+9}, v{Y+4+w}, v{Y+12+w}")
        A("s_mov_b32 vcc_lo, 0xaaaaaaaa")
        A("s_mov_b32 vcc_hi, 0xaaaaaaaa")
        A("v_mov_b32 v5, s46")
        A(f"v_mov_b32 v{G+4}, s47")
        A(f"v_mov_b32 v{G+2}, s48")
        A(f"v_mov_b32 v{G+3}, s49")
        A(f"v_or_b32 v{G}, s46, v{MRED}")
        A(f"v_cndmask_b32 v5, v5, v{G+2}, vcc")
        A(f"v_cndmask_b32 v7, v{G+4}, v{G+3}, vcc")
        A(f"v_and_or_b32 v{G+1}, v{Y+9}, s50, v{G+4}")
        A("s_mov_b64 exec, 1")
        A(f"global_store_dwordx4 v{Q+7}, v[{G}:{G+3}], s[20:21] sc1")
        A("s_mov_b64 exec, -1")
    issued = 0
    idx = {}
    consumed = set()
    done = 0
    kq = 0
    fix = 0
    sm = -2
    nv = 64
    state = {"setup": False, "non": None, "atom": None, "el3": False, "tree": None, "treed": False}
    seen_t = set()
    def dep_at(n):
        if opts.dep2 and 64 + DEP <= n < 64 + DEP + 20: return opts.dep2
        if opts.dep0 and n < 12: return opts.dep0
        if opts.dep3 and n >= opts.dep3at: return opts.dep3
        return DEP
    if opts.qat < 0:
        for x in range(2):
            A(f"global_load_dwordx4 v[{Q+4*x}:{Q+4*x+3}], v7, s[4:5] offset:{128*x}")
        issued += 2; qpos = issued
    for n in range(128 + 1):
        if n < 128:
            d = dep_at(n)
            if n >= d:
                k = issued - 1 - idx[n - d]
                A(f"s_waitcnt vmcnt({k})")
                done = max(done, issued - k)
            if n == d and opts.amp == "first": A("s_memrealtime s[76:77]")
            t, i = KSEQ[n] if n < 64 else VSEQ[n - 64]
            soff = "s25" if t == 0 else ("s26", "s90", "s91", "s92")[t % (KG if n < 64 else VG)]
            if t and (n >= 64, t) not in seen_t:
                A(f"s_add_u32 {soff}, s25, 0x{toff(t):x}"); seen_t.add((n >= 64, t))
            assert n < RING or (n - RING) in consumed, n
            a = areg(n)
            if n < 64: A(f"buffer_load_dwordx4 a[{a}:{a+3}], v5, s[28:31], {soff} offen offset:{kimm(i)} nt")
            else: A(f"buffer_load_dwordx4 a[{a}:{a+3}], v6, s[32:35], {soff} offen offset:{(1024 if opts.kperm else 256)*i} nt")
            idx[n] = issued; issued += 1
            if n == opts.qat:
                for x in range(2):
                    A(f"global_load_dwordx4 v[{Q+4*x}:{Q+4*x+3}], v7, s[4:5] offset:{128*x}")
                issued += 2; qpos = issued
            if n == opts.tlbat and opts.tlb:
                A(f"v_mov_b32 v{E+1}, s25")
                A(f"v_xor_b32 v{E+2}, 0x400000, v{E+1}")
                A(f"v_mov_b32 v{E+3}, 0x100000")
                A("s_mov_b64 exec, 1")
                if opts.tlb & 1: A(f"global_load_dword v{E+4}, v{E+2}, s[6:7] nt"); issued += 1
                if opts.tlb & 2: A(f"global_load_dword v{E+4}, v{E+1}, s[8:9] nt"); issued += 1
                if opts.tlb & 4: A(f"global_load_dword v{E+4}, v{E+2}, s[8:9] nt"); issued += 1
                if opts.tlb & 8: A(f"global_load_dword v{E+4}, v{E+3}, s[20:21] nt"); issued += 1
                A("s_mov_b64 exec, -1")
            if n == 2 and opts.split2:
                A("s_load_dwordx8 s[8:15], s[0:1], 16")
                A("s_load_dwordx4 s[16:19], s[0:1], 48")
                A("s_load_dwordx2 s[20:21], s[0:1], 64")
            if n == max(opts.qat, dep_at(0) - 1):
                if opts.split2: A("s_waitcnt lgkmcnt(0)")
                A(f"v_mov_b32 v{E}, 0x{REF:x}")
                A(f"v_mov_b32 v{E+5}, 1")
                A(f"v_mov_b32 v{E+6}, 0")
                A(f"v_mov_b32 v{E+7}, 0")
                elect(1)
                masks_block()
            if n == 8 and opts.amp:
                A("s_cmp_lt_u32 s2, 8")
                A("s_cselect_b32 s82, s24, 1")
                A("s_cmp_lg_u32 s82, 0")
                A("s_cbranch_scc1 L_noamp")
                A("s_lshl_b32 s82, s2, 2")
                A("s_add_u32 s82, s82, 128")
                A("v_mov_b32 v120, s82")
                A("v_mov_b32 v121, s80")
                A("s_mov_b64 exec, 1")
                A("global_store_dword v120, v121, s[18:19] sc1")
                A("s_mov_b64 exec, -1")
                A("L_noamp:")
            if n == 16:
                elect(2)
            if n == 24:
                issued += role_block(); state["tree"] = issued
            if not opts.latetree and state["tree"] is not None and not state["treed"] and done >= state["tree"]:
                treeblock(); state["treed"] = True
            if n == 127 and opts.latetree == 1:
                tree_loads(); issued += 4; state["treed"] = True
            if opts.latetree == 2:
                if n == 26 and opts.spf:
                    A("s_cmp_lt_u32 s23, 24")
                    A("s_cbranch_scc1 L_nopf")
                    A("s_load_dword s90, s[4:5], s42")
                    A("s_load_dword s91, s[10:11], s43")
                    A("s_add_u32 s27, s43, s56")
                    A("s_load_dword s92, s[12:13], s27")
                    A("s_load_dword s93, s[14:15], 0")
                    A("s_add_u32 s27, s42, 128")
                    A("s_load_dword s94, s[4:5], s27")
                    A("s_add_u32 s27, s43, 128")
                    A("s_load_dword s95, s[10:11], s27")
                    A("L_nopf:")
                if n == opts.treeat:
                    A("s_cmp_ge_u32 s23, 24")
                    A("s_cselect_b64 exec, -1, 0")
                    tree_loads(); issued += 4
                    if opts.otouch:
                        A(f"global_load_ushort v{E+1}, v23, s[16:17]"); issued += 1
                    state["tree2"] = issued
                    A("s_mov_b64 exec, -1")
                elif "tree2" in state and not state["treed"] and done >= state["tree2"]:
                    treeblock(); state["treed"] = True
        else:
            rendezvous()
        if kq < 16 and all(KPOS[(kq, i)] in idx and done > idx[KPOS[(kq, i)]] for i in range(4)) and done >= qpos:
            qk(kq)
            for i in range(4): consumed.add(KPOS[(kq, i)])
            kq += 1
            if kq >= 2:
                if kq == 2: A("s_nop 3")
                fixup(kq - 2); fix = kq - 1
        elif kq == 16 and fix == 15:
            fixup(15); fix = 16
            maxblock(); sm = 0
        elif fix == 16:
            if sm < 16:
                softmax(sm); sm += 1
                if sm == 16:
                    if opts.snon:
                        A(f"s_load_dwordx2 s[38:39], s[18:19], 0 {opts.sglc}")
                        state["non"] = 0
                    else:
                        A(f"global_load_dwordx2 v[{NON}:{NON+1}], v{NON}, s[18:19] sc1")
                        issued += 1; state["non"] = issued
            elif not state["setup"]:
                setup(); state["setup"] = True
            while nv in idx and done > idx[nv] and VSEQ[nv - 64][0] < sm:
                pv(nv); consumed.add(nv); nv += 1
    assert state["setup"] and state["treed"] and done >= state["non"]
    while nv < 128:
        A(f"s_waitcnt vmcnt({issued - 1 - idx[nv]})")
        pv(nv); nv += 1
    stamp(2)
    A("s_cmp_lt_u32 s23, 24")
    A("s_nop 5")
    for j in range(4):
        A(f"v_pk_mul_f32 v[{O+2*j}:{O+2*j+1}], v[{O+2*j}:{O+2*j+1}], v[0:1] op_sel_hi:[1,0]")
        if j == 1: A(f"ds_write_b128 v{Q+2}, v[{O}:{O+3}]")
    A(f"ds_write_b128 v{Q+2}, v[{O+4}:{O+7}] offset:{HI}")
    A("s_waitcnt lgkmcnt(0)")
    A("s_barrier")
    for j in range(4):
        A(f"ds_read_b64 v[{T+2*j}:{T+2*j+1}], v{Q+3} offset:{SRC*j}")
    A("s_waitcnt lgkmcnt(2)")
    A(f"v_pk_add_f32 v[{T}:{T+1}], v[{T}:{T+1}], v[{T+2}:{T+3}]")
    A("s_waitcnt lgkmcnt(0)")
    A(f"v_pk_add_f32 v[{T+4}:{T+5}], v[{T+4}:{T+5}], v[{T+6}:{T+7}]")
    A(f"v_pk_add_f32 v[{T}:{T+1}], v[{T}:{T+1}], v[{T+4}:{T+5}]")
    A(f"v_and_or_b32 v{T}, v{T}, s50, v5")
    A(f"v_and_or_b32 v{T+1}, v{T+1}, s50, v7")
    A(f"global_store_dwordx2 v{Q+6}, v[{T}:{T+1}], s[20:21] {opts.pmod}")
    stamp(3)
    A("s_cbranch_scc1 L_fin")
    P, Yv = 96, 112
    masks = ["s[58:59]", "s[60:61]", "s[62:63]"]
    W0 = T + 2
    M, Lr, F, TM, TT2 = T + 8, T + 9, T + 12, T + 11, T + 10
    acc = T + 16
    def poll_issue(js, first):
        for j in js:
            if not first: A(f"s_mov_b64 exec, {masks[j]}")
            if j == 0: A(f"global_load_dwordx4 v[{P}:{P+3}], v{Q+4}, s[20:21] sc1")
            else: A(f"global_load_dwordx4 v[{P+4*j}:{P+4*j+3}], v16, s[20:21] offset:{1024*(j-1)} sc1")
        if not first: A("s_mov_b64 exec, -1")
    def poll_check(j):
        A(f"s_waitcnt vmcnt({2 - j})")
        for e in range(4):
            A(f"v_xor_b32 v{Yv+4*j+e}, s{46+e}, v{P+4*j+e}")
            if j == 0 and e == 1: A(f"v_readfirstlane_b32 s57, v{Yv}")
        A(f"v_or3_b32 v{W0}, v{Yv+4*j}, v{Yv+4*j+1}, v{Yv+4*j+2}")
        A(f"v_bitop3_b32 v{W0}, v{W0}, v{Yv+4*j+3}, s44 bitop3:0xa8   ; (a | b) & mask")
        A(f"v_cmp_ne_u32 {masks[j]}, 0, v{W0}")
    poll_issue((0, 1, 2), True)
    A(f"s_mov_b32 s51, {opts.spin}")
    A("L_pollA:")
    poll_check(0)
    A(f"v_subrev_f32 v{F}, s57, v{Yv}")
    A(f"v_subrev_f32 v{FT}, s57, v22")
    A("s_cmp_lg_u64 s[58:59], 0")
    A("s_cbranch_scc1 L_retryA")
    A("L_goA:")
    A(f"v_max_f32 v{M}, v{F}, v{FT}")
    A(f"v_exp_f32 v{FT}, v{FT}")
    A(f"v_exp_f32 v{F}, v{F}")
    A(f"v_cmp_lt_f32 vcc, 0x41800000, v{M}")
    A(f"v_mul_f32 v{Lr}, v{F}, v{Yv+1}")
    A("s_cbranch_vccnz L_slow")
    A("L_back4:")
    A(f"v_mul_f32 v{TT2}, v{FT}, v18         ; tree term")
    for mod in ("quad_perm:[1,0,3,2]", "row_ror:4", "row_ror:8"):
        A(f"v_add_f32_dpp v{Lr}, v{Lr}, v{Lr} {mod} {D}")
        if mod != "row_ror:8": A("s_nop 1")
    for sw in ("v_permlane16_swap_b32", "v_permlane32_swap_b32"):
        A(f"v_mov_b32 v{TM}, v{Lr}")
        A("s_nop 1")
        A(f"{sw} v{Lr}, v{TM}")
        A(f"v_add_f32 v{Lr}, v{Lr}, v{TM}")
    A(f"v_add_f32 v{Lr}, v{Lr}, v{FT}")
    A(f"v_rcp_f32 v{Lr}, v{Lr}")
    A("L_pollB:")
    poll_check(1)
    poll_check(2)
    for e in range(4): A(f"v_mul_f32_dpp v{acc+e}, v{F}, v{Yv+4+e} quad_perm:[0,0,0,0] {D}")
    A("s_or_b64 s[52:53], s[60:61], s[62:63]")
    A("s_cbranch_scc1 L_retryB")
    A("L_go:")
    stamp(4)
    if opts.stamps:
        A(f"s_sub_u32 s74, {opts.spin+1}, s51")
    for e in range(4): A(f"v_fmac_f32_dpp v{acc+e}, v{F}, v{Yv+8+e} quad_perm:[1,1,1,1] {D}")
    A("s_nop 0")
    A(f"v_permlane16_swap_b32 v{acc}, v{acc+1}")
    A(f"v_permlane16_swap_b32 v{acc+2}, v{acc+3}")
    A(f"v_add_f32 v{acc}, v{acc}, v{acc+1}")
    A(f"v_add_f32 v{acc+2}, v{acc+2}, v{acc+3}")
    A("s_nop 1")
    A(f"v_permlane32_swap_b32 v{acc}, v{acc+2}")
    A(f"v_add_f32 v{acc}, v{acc}, v{acc+2}")
    A("s_nop 1")
    A(f"v_add_f32_dpp v{acc}, v{acc}, v{acc} row_ror:4 {D}")
    A("s_nop 1")
    A(f"v_add_f32_dpp v{acc}, v{acc}, v{acc} row_ror:8 {D}")
    A(f"v_add_f32 v{acc}, v{acc}, v{TT2}")
    A(f"v_mul_f32 v{acc}, v{Lr}, v{acc}")
    A("s_mov_b32 exec_lo, 0x000f000f")
    A("s_mov_b32 exec_hi, 0x000f000f")
    A(f"v_cvt_pk_bf16_f32 v{acc}, v{acc}, v{acc}")
    A(f"global_store_short v23, v{acc}, s[16:17] {opts.omod}")
    stamp(7)
    if opts.amp:
        A("s_memrealtime s[82:83]")
        if opts.amp == "ack":
            A("s_waitcnt vmcnt(0)")
            A("s_memrealtime s[88:89]")
        A("s_mov_b64 exec, -1")
        A("v_and_b32 v120, 7, v1")
        A("v_lshl_add_u32 v120, v120, 2, 64")
        A("v_add_u32 v120, 64, v120")
        A("global_load_dword v121, v120, s[18:19] sc1")
        A("s_waitcnt vmcnt(0) lgkmcnt(0)")
        for k in range(8): A(f"v_readlane_b32 s{4+k}, v121, {k}")
        A("s_min_u32 s84, s4, s5")
        for k in range(2, 8): A(f"s_min_u32 s84, s84, s{4+k}")
        A("s_max_u32 s85, s4, s5")
        for k in range(2, 8): A(f"s_max_u32 s85, s85, s{4+k}")
        if opts.amp == "T": A("s_sub_u32 s85, s82, s84"); A("s_sub_i32 s85, s85, 1500")
        elif opts.amp == "skew": A("s_sub_u32 s85, s85, s84")
        elif opts.amp == "zero": A("s_mov_b32 s85, 0")
        elif opts.amp == "ack": A("s_sub_u32 s85, s88, s82")
        elif opts.amp == "karg": A("s_sub_u32 s85, s78, s80")
        elif opts.amp == "first": A("s_sub_u32 s85, s76, s80")
        else: A(f"s_sub_u32 s85, s{4+int(opts.amp)}, s84")
        A("s_max_i32 s85, s85, 0")
        A("s_min_i32 s85, s85, 3000")
        A(f"s_lshl_b32 s85, s85, {opts.ampsh}")
        A("L_spin:")
        A("s_memrealtime s[86:87]")
        A("s_waitcnt lgkmcnt(0)")
        A("s_sub_u32 s86, s86, s82")
        A("s_cmp_lt_u32 s86, s85")
        A("s_cbranch_scc1 L_spin")
    A("L_fin:")
    if opts.stamps:
        A(f"s_cmp_lg_u32 s24, {opts.stampwave}")
        A("s_cbranch_scc1 L_end")
        A("s_mov_b64 exec, 1")
        A("s_lshl_b32 s26, s2, 6")
        A("s_add_u32 s26, s26, 0x200000")
        A("v_mov_b32 v0, s26")
        for j in range(4):
            for e in range(4):
                A(f"v_mov_b32 v{8+e}, s{64+4*j+e}")
            A(f"global_store_dwordx4 v0, v[8:11], s[20:21] offset:{16*j}")
            A("s_nop 1")
    A("L_end:")
    A("s_endpgm")
    def el1():
        A(f"global_load_dword v{E+4}, v{E}, s[20:21] sc1")
    def el2(ret):
        A(f"v_add_u32 v{E+4}, 1, v{E+4}")
        if ret: A(f"global_atomic_cmpswap_x2 v[{E+2}:{E+3}], v{E+6}, v[{E+4}:{E+7}], s[18:19] sc0 sc1")
        else: A(f"global_atomic_cmpswap_x2 v{E+6}, v[{E+4}:{E+7}], s[18:19] sc1")
    for n, f in ((1, el1), (2, lambda: el2(False))):
        A(f"L_el{n}:")
        A("s_mov_b64 exec, 1")
        f()
        A("s_mov_b64 exec, -1")
        A(f"s_branch L_el{n}b")
    A("L_late:")
    A("s_mov_b64 exec, 1")
    if opts.cntfb:
        A(f"v_mov_b32 v{E+2}, 64")
        A(f"global_atomic_add v{E+2}, v{E+5}, s[18:19] sc1")
    el1(); A("s_waitcnt vmcnt(0)")
    el2(True); A("s_waitcnt vmcnt(0)")
    A(f"v_cmp_eq_u32 vcc, 0, v{E+3}")
    A("s_nop 1")
    A(f"v_cndmask_b32 v{E+2}, v{E+2}, v{E+4}, vcc")
    if opts.snon: A("s_nop 0"); A(f"v_readfirstlane_b32 s45, v{E+2}")
    else: A(f"v_mov_b32 v{NON}, v{E+2}")
    A("s_mov_b64 exec, -1")
    A("s_branch L_lateb")
    A("L_retryA:")
    A("s_sub_u32 s51, s51, 1")
    A("s_cbranch_scc1 L_goA")
    poll_check(1)
    poll_check(2)
    poll_issue((0, 1, 2), False)
    A("s_branch L_pollA")
    A("L_retryB:")
    A("s_sub_u32 s51, s51, 1")
    A("s_cbranch_scc1 L_go")
    poll_issue((1, 2), False)
    A("s_branch L_pollB")
    A("L_slow:")
    A(f"v_max_f32 v{M}, v{Yv}, v22")
    A("s_nop 1")
    for mod in ("quad_perm:[1,0,3,2]", "row_ror:4", "row_ror:8"):
        A(f"v_max_f32_dpp v{M}, v{M}, v{M} {mod} {D}")
        A("s_nop 1")
    for sw in ("v_permlane16_swap_b32", "v_permlane32_swap_b32"):
        A(f"v_mov_b32 v{TM}, v{M}")
        A("s_nop 1")
        A(f"{sw} v{M}, v{TM}")
        A(f"v_max_f32 v{M}, v{M}, v{TM}")
    A(f"v_sub_f32 v{F}, v{Yv}, v{M}")
    A(f"v_sub_f32 v{FT}, v22, v{M}")
    A(f"v_exp_f32 v{F}, v{F}")
    A(f"v_exp_f32 v{FT}, v{FT}")
    A("s_nop 0")
    A(f"v_mul_f32 v{Lr}, v{F}, v{Yv+1}")
    A("s_branch L_back4")
    A('.section .rodata,"a"')
    A(".p2align 6")
    A(f".amdhsa_kernel {NAME}_kernel")
    A(f"  .amdhsa_next_free_vgpr {256 + 4 * RING}")
    A("  .amdhsa_next_free_sgpr 96")
    A("  .amdhsa_accum_offset 256")
    A("  .amdhsa_group_segment_fixed_size 0")
    A("  .amdhsa_kernarg_size 72")
    A("  .amdhsa_user_sgpr_count 2")
    A("  .amdhsa_user_sgpr_kernarg_segment_ptr 1")
    A("  .amdhsa_system_sgpr_workgroup_id_x 1")
    A(".end_amdhsa_kernel")
    out = []
    for l in L:
        if l.startswith((";", ".", "L_")) or l.endswith(":") or l.startswith("  ."):
            out.append(l)
        else:
            out.append("    " + l.rstrip())
    return "\n".join(out) + "\n"

if __name__ == "__main__":
    ap = argparse.ArgumentParser()
    ap.add_argument("-o", default="/dev/stdout")
    ap.add_argument("--wb", default="12,13")
    ap.add_argument("--tb", default="18,16,22,17")
    ap.add_argument("--sb", default="14,15,21,20,19")
    ap.add_argument("--dep", type=int, default=6)
    ap.add_argument("--dep2", type=int, default=0)
    ap.add_argument("--dep0", type=int, default=0)
    ap.add_argument("--latetree", type=int, default=2)
    ap.add_argument("--snon", type=int, default=0)
    ap.add_argument("--sglc", default="")
    ap.add_argument("--cntfb", type=int, default=0)
    ap.add_argument("--tlb", type=int, default=0)
    ap.add_argument("--tlbat", type=int, default=5)
    ap.add_argument("--dual", type=lambda x: int(x, 0), default=0)
    ap.add_argument("--gap", type=int, default=5)
    ap.add_argument("--treeat", type=int, default=100)
    ap.add_argument("--spf", type=int, default=0)
    ap.add_argument("--split2", type=int, default=1)
    ap.add_argument("--noelect", type=int, default=0)
    ap.add_argument("--amp", default="")
    ap.add_argument("--ampsh", type=int, default=4)
    ap.add_argument("--wait0", type=int, default=0)
    ap.add_argument("--thr", type=int, default=0)
    ap.add_argument("--psleep", type=int, default=0)
    ap.add_argument("--sthr", type=int, default=16)
    ap.add_argument("--kperm", type=int, default=0)
    ap.add_argument("--kord", default="0,2,1,3")
    ap.add_argument("--vord", default="0,1,2,3")
    ap.add_argument("--dep3", type=int, default=0)
    ap.add_argument("--dep3at", type=int, default=112)
    ap.add_argument("--omod", default="")
    ap.add_argument("--pmod", default="sc1")
    ap.add_argument("--otouch", type=int, default=0)
    ap.add_argument("--ring", type=int, default=28)
    ap.add_argument("--qat", type=int, default=1)
    ap.add_argument("--hshift", type=int, default=5)
    ap.add_argument("--hmask", type=int, default=6)
    ap.add_argument("--cx", type=int, default=1)
    ap.add_argument("--ackwait", type=int, default=0)
    ap.add_argument("--spin", type=int, default=20000)
    ap.add_argument("--stamps", type=int, default=0)
    ap.add_argument("--stampwave", type=int, default=0)
    o = ap.parse_args()
    open(o.o, "w").write(gen(o))
```

```python
import sys, struct, math, argparse

NAME = "standalone__tree_speculative_verify_tree_attention_over_candidate_token_tree__decode"
def f2u(x): return struct.unpack("<I", struct.pack("<f", x))[0]

HEADER = """; Kernarg layout for this problem (72 bytes, ptrs only, base s[0:1]):
;   offset  24: d_in[3] k_tree  shape=(1, 8, 1, 128) dtype=bfloat16
;   offset  32: d_in[4] v_tree  shape=(1, 8, 1, 128) dtype=bfloat16
;   offset  40: d_in[5] tree_mask  shape=(1, 1, 1) dtype=bfloat16
"""
DESC = """
;
; spreads the concurrent requests over the HBM stacks, channels and banks.
;  The tree token is merged by the combining waves as one more split.
"""
SRC, HI = 2304, 1152
LM, LL = 9216, 9280
REF = 0x80000
NT = 16
TB = int(__import__("os").environ.get("TB", 11))
TMASK = (1 << TB) - 1
TOFF = (0, 0x2a5, 0x13b, 0x6d2)

def gen(opts):
    L = []
    A = L.append
    C = (128 ** -0.5) * math.log2(math.e)
    tb = [int(x) for x in opts.tb.split(",")]
    sb = [int(x) for x in opts.sb.split(",")]
    def toff(t): return sum(((t >> i) & 1) << b for i, b in enumerate(tb))
    def stamp(j):
        if opts.stamps:
            A(f"s_memrealtime s[{64+2*j}:{65+2*j}]")
            A("s_waitcnt lgkmcnt(0)")
    DEP = opts.dep
    RING = opts.ring
    D = "row_mask:0xf bank_mask:0xf"
    A(HEADER.rstrip())
    A("; @launch grid=(256,1,1) block=(256,1,1) lds=9472")
    for line in DESC.strip("\n").split("\n"): A(line)
    A('.amdgcn_target "amdgcn-amd-amdhsa--gfx950"')
    A(".text")
    A(f".globl {NAME}_kernel")
    A(".p2align 8")
    A(f".type {NAME}_kernel,@function")
    A(f"{NAME}_kernel:")
    if opts.stamps:
        for j in range(8): A(f"s_mov_b64 s[{64+2*j}:{65+2*j}], 0")
    stamp(0)
    if opts.amp: A("s_memrealtime s[80:81]")
    A("s_load_dwordx2 s[28:29], s[0:1], 8")
    if opts.split2:
        A("s_load_dwordx2 s[4:5], s[0:1], 0")
    else:
        A("s_load_dwordx16 s[4:19], s[0:1], 0")
        A("s_load_dwordx2 s[20:21], s[0:1], 64")
    A("s_cmp_ge_u32 s2, 256")
    A("s_cbranch_scc1 L_end")
    A("v_lshrrev_b32 v2, 6, v0")
    A("v_and_b32 v5, 7, v0")
    A("v_readfirstlane_b32 s24, v2")
    A("v_bfe_u32 v4, v0, 4, 2               ; g")
    A("s_and_b32 s22, s2, 7")
    A("s_lshr_b32 s23, s2, 3                ; split")
    if opts.hshift:
        A(f"s_lshr_b32 s26, s2, {opts.hshift}")
        if opts.hmask != 7: A(f"s_and_b32 s26, s26, {opts.hmask}")
        A("s_xor_b32 s22, s22, s26")
    if opts.kperm:
        A("v_bfe_u32 v6, v0, 2, 1")
        A("v_and_b32 v5, 3, v0")
        A("v_lshl_add_u32 v5, v5, 2, v6")
    A("v_lshlrev_b32 v5, 8, v5")
    A("v_bfe_u32 v6, v0, 3, 1")
    A("s_lshl_b32 s25, s22, 23")
    i = 0
    while i < 5:
        n = 1
        while i + n < 5 and sb[i + n] == sb[i] + n: n += 1
        A(f"s_bfe_u32 s26, s23, 0x{(n << 16) | i:x}")
        A(f"s_lshl_b32 s26, s26, {sb[i]}")
        A("s_or_b32 s25, s25, s26")
        i += n
    A("v_lshl_add_u32 v5, v6, 6, v5")
    A("v_lshl_add_u32 v5, v4, 4, v5")
    wb = [int(x) for x in opts.wb.split(",")]
    assert sorted(wb + tb + sb) == list(range(12, 23))
    if wb[1] == wb[0] + 1:
        A(f"s_lshl_b32 s26, s24, {wb[0]}")
        A("s_or_b32 s25, s25, s26")
    else:
        for i in range(2):
            A(f"s_bfe_u32 s26, s24, 0x{0x10000 + i:x}")
            A(f"s_lshl_b32 s26, s26, {wb[i]}")
            A("s_or_b32 s25, s25, s26")
    A("s_mov_b32 s30, 0x4000000")
    A("s_mov_b32 s31, 0x20000")
    A("v_and_b32 v3, 15, v0                 ; m / n / c")
    A("v_and_b32 v1, 63, v0                 ; lane")
    A("v_lshrrev_b32 v7, 2, v3")
    A("v_lshlrev_b32 v7, 8, v7")
    A("v_bfe_u32 v6, v0, 1, 1")
    A("v_lshl_add_u32 v7, v6, 6, v7")
    A("v_lshl_add_u32 v7, v4, 4, v7")
    A("s_lshl_b32 s27, s22, 10")
    A("v_add_u32 v7, s27, v7")
    A("s_waitcnt lgkmcnt(0)")
    stamp(1)
    if opts.amp == "karg": A("s_memrealtime s[78:79]")
    Q, DT, O, T, PA = 8, 24, 40, 48, 128
    NON, MRED, FT = 20, 17, 19
    G, E = 80, 88
    def areg(n): return 4 * (n % RING)
    KORD = [int(x) for x in opts.kord.split(",")]
    KG = len(KORD) // 4
    KSEQ = [(g * KG + (e >> 2), e & 3) for g in range(16 // KG) for e in KORD]
    KPOS = {tj: n for n, tj in enumerate(KSEQ)}
    VORD = [int(x) for x in opts.vord.split(",")]
    VG = len(VORD) // 4
    VSEQ = [(g * VG + (e >> 2), e & 3) for g in range(16 // VG) for e in VORD]
    def kimm(j): return (j >> 1) * (512 if opts.kperm else 2048) + (j & 1) * 128
    def slot(t, r): return PA + 8 * t + 2 * r
    X = DT + 16 - 16
    def masks_block():
        A("v_and_b32 v2, 3, v3                  ; jj")
        A("v_mov_b32 v7, 0xffff")
        A("v_and_b32 v0, 1, v2")
        A("v_lshlrev_b32 v0, 4, v0")
        A("v_lshlrev_b32 v7, v0, v7")
        A("v_cmp_gt_u32 vcc, 2, v2              ; jj < 2")
        A(f"s_mov_b32 s40, 0x{f2u(C):08x}       ; scale*log2e")
        A("v_mov_b32 v0, 0xff800000")
        A("v_cndmask_b32 v2, 0, v7, vcc         ; mask0")
        A("v_cndmask_b32 v7, v7, 0, vcc         ; mask1")
    TR = 125 if opts.latetree else 16
    TQ, TK, TV, TMK = (125, 126, 18, 127) if opts.latetree else (16, 17, 18, 19)
    def tree_loads():
        A(f"global_load_dword v{TQ}, v{TQ}, s[4:5]")
        A(f"global_load_dword v{TK}, v{TK}, s[10:11]")
        A(f"global_load_ushort v{TV}, v{TV}, s[12:13]")
        A(f"global_load_ushort v{TMK}, v{TMK}, s[14:15]")
    def role_block():
        A("s_bfe_u32 s41, s23, 0x20001          ; hc")
        A(f"s_xor_b32 s43, s22, {opts.cx}               ; chead")
        A("s_lshl_b32 s42, s43, 2")
        A("s_add_u32 s42, s42, s41")
        A("s_lshl_b32 s42, s42, 8               ; (chead*4+hc)*256")
        A("s_lshl_b32 s43, s43, 8               ; chead*256")
        A(f"v_lshl_add_u32 v{TQ}, v1, 2, s42")
        A(f"v_lshl_add_u32 v{TK}, v1, 2, s43")
        A("s_and_b32 s56, s23, 1")
        A("s_lshl_b32 s56, s56, 2")
        A("s_add_u32 s56, s56, s24")
        A("s_lshl_b32 s56, s56, 5               ; chunk*32")
        A("v_and_b32 v23, 3, v1")
        A("v_lshl_add_u32 v23, v23, 2, v4")
        A("v_lshl_add_u32 v23, v23, 1, s56")
        A("v_add_u32 v18, s43, v23")
        A(f"v_mov_b32 v{TMK}, 0")
        if not opts.latetree: tree_loads()
        A(f"v_lshrrev_b32 v{Q1}, 2, v3")
        A("s_lshl_b32 s27, s24, 2")
        A(f"v_lshl_add_u32 v{Q1}, v{Q1}, 4, s27")
        A(f"v_mov_b32 v{NON}, 0")
        if opts.kperm:
            A("v_lshlrev_b32 v6, 4, v1")
        else:
            A("v_lshlrev_b32 v6, 10, v4")
            A("v_lshl_add_u32 v6, v3, 4, v6")
        A("s_mov_b32 s32, s8")
        A("s_mov_b32 s33, s9")
        A("s_mov_b32 s34, 0x4000000")
        A("s_mov_b32 s35, 0x20000")
        return 0 if opts.latetree else 4
    def elect(n):
        A(f"s_cmp_eq_u32 s25, {1 if opts.noelect else 0}")
        A(f"s_cbranch_scc1 L_el{n}")
        A(f"L_el{n}b:")
    def qk(t):
        d0 = DT + 8 * (t & 1); d1 = d0 + 4
        k = [areg(KPOS[(t, i)]) for i in range(4)]
        A(f"v_mfma_f32_16x16x32_bf16 v[{d0}:{d0+3}], a[{k[0]}:{k[0]+3}], v[{Q}:{Q+3}], 0")
        A(f"v_mfma_f32_16x16x32_bf16 v[{d1}:{d1+3}], a[{k[2]}:{k[2]+3}], v[{Q}:{Q+3}], 0")
        A(f"v_mfma_f32_16x16x32_bf16 v[{d0}:{d0+3}], a[{k[1]}:{k[1]+3}], v[{Q+4}:{Q+7}], v[{d0}:{d0+3}]")
        A(f"v_mfma_f32_16x16x32_bf16 v[{d1}:{d1+3}], a[{k[3]}:{k[3]+3}], v[{Q+4}:{Q+7}], v[{d1}:{d1+3}]")
    def fixup(t):
        d0 = DT + 8 * (t & 1); d1 = d0 + 4
        for r in range(4):
            A(f"v_permlane32_swap_b32 v{d0+r}, v{d1+r}")
        for r in range(4):
            A(f"v_add_f32_dpp v{slot(t,r)}, v{d1+r}, v{d0+r} quad_perm:[2,3,2,3] {D}")
        A(f"v_max3_f32 v0, v0, v{slot(t,0)}, v{slot(t,1)}")
        A(f"v_max3_f32 v0, v0, v{slot(t,2)}, v{slot(t,3)}")
    def maxblock():
        A("v_mov_b32 v5, v0")
        for j in range(2): A(f"v_mov_b32 v{O+j}, 0")
        A("v_permlane16_swap_b32 v0, v5")
        A("v_max_f32 v0, v0, v5")
        A("v_mov_b32 v5, v0")
        for j in range(2, 4): A(f"v_mov_b32 v{O+j}, 0")
        A("v_permlane32_swap_b32 v0, v5")
        A("v_max_f32 v0, v0, v5")
        A("v_mul_f32 v0, s40, v0                ; m*c")
        for j in range(4, 8): A(f"v_mov_b32 v{O+j}, 0")
        A("v_mov_b32 v5, 0                      ; l")
        A("s_mov_b64 exec, 0x1111")
        A(f"ds_write_b32 v{Q1}, v0 offset:{LM}")
        A("s_mov_b64 exec, -1")
    Q1 = 96 + 28
    def treeblock():
        A("v_mov_b32 v22, 0")
        A(f"v_dot2c_f32_bf16 v22, v{TQ}, v{TK}       ; tree score partial")
        A(f"v_lshlrev_b32 v{TMK}, 16, v{TMK}")
        A(f"v_sub_f32 v{TMK}, 1.0, v{TMK}")
        A(f"v_mul_f32 v{TMK}, 0x{f2u(-1e9*math.log2(math.e)):08x}, v{TMK}")
        A("v_lshlrev_b32 v18, 16, v18           ; v_tree element as f32")
        for sh in (1, 2, 4, 8):
            A(f"v_add_f32_dpp v22, v22, v22 row_ror:{sh} {D}")
            if sh < 8: A("s_nop 1")
        for sw in ("v_permlane16_swap_b32", "v_permlane32_swap_b32"):
            A(f"v_mov_b32 v{TQ}, v22")
            A("s_nop 1")
            A(f"{sw} v22, v{TQ}")
            A(f"v_add_f32 v22, v22, v{TQ}")
        A(f"v_fma_f32 v22, v22, s40, v{TMK}         ; tree score (log2 units)")
    def softmax(t):
        X = DT
        for r in range(4):
            A(f"v_fma_f32 v{slot(t,r)}, v{slot(t,r)}, s40, -v0")
        for r in range(4):
            A(f"v_exp_f32_dpp v{slot(t,r)}, v{slot(t,r)} quad_perm:[0,1,0,1] {D}")
        for r in range(4):
            A(f"v_cvt_pk_bf16_f32 v{X+r}, v{slot(t,r)}, v{slot(t,r)}")
        A(f"v_add_f32 v{X+4}, v{slot(t,0)}, v{slot(t,1)}")
        A(f"v_add_f32 v{X+5}, v{slot(t,2)}, v{slot(t,3)}")
        for r in range(4):
            A(f"v_and_b32 v{slot(t,r)}, v{X+r}, v2")
            A(f"v_and_b32 v{slot(t,r)+1}, v{X+r}, v7")
        A(f"v_add_f32 v{X+4}, v{X+4}, v{X+5}")
        A(f"v_add_f32 v5, v5, v{X+4}")
    def pv(n):
        t, r = VSEQ[n - 64]
        a = areg(n)
        A(f"v_mfma_f32_16x16x16_bf16 v[{O}:{O+3}], v[{slot(t,r)}:{slot(t,r)+1}], a[{a}:{a+1}], v[{O}:{O+3}]")
        A(f"v_mfma_f32_16x16x16_bf16 v[{O+4}:{O+7}], v[{slot(t,r)}:{slot(t,r)+1}], a[{a+2}:{a+3}], v[{O+4}:{O+7}]")
    def setup():
        A("v_mov_b32 v0, v5")
        A(f"s_mul_i32 s27, s24, {SRC}")
        A(f"v_lshl_add_u32 v{Q+2}, v1, 4, s27")
        A("v_permlane16_swap_b32 v5, v0")
        A("v_add_f32 v5, v5, v0")
        A("v_mov_b32 v0, v5")
        A(f"v_bfe_u32 v{Q+3}, v1, 1, 1")
        A(f"v_mul_u32_u24 v{Q+3}, {HI}, v{Q+3}")
        A("v_permlane32_swap_b32 v5, v0")
        A("v_add_f32 v5, v5, v0                 ; l")
        A("s_mov_b64 exec, 0x1111")
        A(f"ds_write_b32 v{Q1}, v5 offset:{LL}")
        A("s_mov_b64 exec, -1")
        A("v_lshrrev_b32 v0, 2, v1")
        A(f"v_lshl_add_u32 v{Q+3}, v0, 4, v{Q+3}")
        A("v_and_b32 v0, 1, v1")
        A(f"v_lshl_add_u32 v{Q+3}, v0, 3, v{Q+3}")
        A("s_lshl_b32 s27, s24, 8")
        A(f"v_add_u32 v{Q+3}, s27, v{Q+3}")
        A("s_lshl_b32 s36, s22, 2")
        A("s_add_u32 s36, s36, s24              ; head*4 + w")
        A("s_lshl_b32 s27, s36, 14")
        A("s_lshl_b32 s37, s23, 6")
        A("s_add_u32 s27, s27, s37")
        A("v_lshrrev_b32 v0, 3, v1")
        A(f"v_lshl_add_u32 v{Q+6}, v0, 11, s27")
        A("v_and_b32 v0, 7, v1")
        A(f"v_lshl_add_u32 v{Q+6}, v0, 3, v{Q+6}")
        A("s_lshl_b32 s27, s36, 9")
        A("s_lshl_b32 s37, s23, 4")
        A("s_add_u32 s27, s27, s37")
        A("s_add_u32 s27, s27, 0x80000")
        A(f"v_mov_b32 v{Q+7}, s27")
        A("s_lshl_b32 s27, s42, 6")
        A("s_lshl_b32 s37, s56, 6")
        A("s_add_u32 s27, s27, s37")
        A("v_lshl_add_u32 v16, v1, 4, s27")
        A("s_lshl_b32 s27, s42, 1")
        A("s_add_u32 s27, s27, 0x80000")
        A("v_lshrrev_b32 v0, 2, v1")
        A(f"v_lshl_add_u32 v{Q+4}, v0, 4, s27")
        A("v_and_b32 v0, 1, v1")
        A(f"v_lshl_add_u32 v{Q+4}, v0, 8, v{Q+4}")
        A("v_add_u32 v23, s42, v23")
        A(f"s_mov_b32 s50, 0x{0xffffffff ^ TMASK:08x}")
        A(f"s_movk_i32 s44, 0x{TMASK:x}")
        if opts.dual:
            A(f"s_add_u32 s54, s20, 0x{opts.dual:x}")
            A("s_addc_u32 s55, s21, 0")
        A("v_lshlrev_b32 v2, 4, v4")
        A("s_lshl_b32 s27, s24, 2")
        A(f"v_add_u32 v{Q+1}, s27, v2")
        A("s_lshl_b32 s27, s24, 4")
        A(f"v_mov_b32 v{Q+5}, s27               ; w*16")
    def rendezvous():
        Y = T
        A("s_waitcnt lgkmcnt(0)")
        A("s_barrier")
        A(f"ds_read_b128 v[{Y}:{Y+3}], v2 offset:{LM}")
        A(f"ds_read_b128 v[{Y+4}:{Y+7}], v{Q+5} offset:{LM}")
        A(f"ds_read_b32 v{Y+8}, v{Q+1} offset:{LM}")
        A(f"ds_read_b128 v[{Y+12}:{Y+15}], v{Q+5} offset:{LL}")
        if opts.snon:
            A("s_mov_b32 s45, s38")
            A("s_cmp_eq_u32 s39, 0")
            A("s_cbranch_scc1 L_late")
            A("L_lateb:")
        else:
            A(f"v_readfirstlane_b32 s37, v{NON+1}")
            A("s_cmp_eq_u32 s37, 0")
            A("s_cbranch_scc1 L_late")
            A("L_lateb:")
            A(f"v_readfirstlane_b32 s45, v{NON}")
        A("s_waitcnt lgkmcnt(0)")
        A(f"v_max3_f32 v0, v{Y}, v{Y+1}, v{Y+2}")
        A(f"v_max3_f32 v{MRED}, v{Y+4}, v{Y+5}, v{Y+6}")
        A(f"v_max_f32 v0, v0, v{Y+3}")
        A(f"v_max_f32 v{MRED}, v{MRED}, v{Y+7}")
        A("v_and_b32 v0, s50, v0")
        A(f"v_and_b32 v{MRED}, s50, v{MRED}")
        A(f"v_sub_f32 v0, v{Y+8}, v0")
        for w in range(4): A(f"v_sub_f32 v{Y+4+w}, v{Y+4+w}, v{MRED}")
        A("v_exp_f32 v0, v0")
        for w in range(4): A(f"v_exp_f32 v{Y+4+w}, v{Y+4+w}")
        A("s_and_b32 s46, s45, s44")
        for e in range(1, 4):
            A(f"s_add_u32 s{46+e}, s45, 0x{TOFF[e]:x}")
            A(f"s_and_b32 s{46+e}, s{46+e}, s44")
        A(f"v_mul_f32 v{Y+9}, v{Y+4}, v{Y+12}")
        for w in range(1, 4): A(f"v_fmac_f32 v{Y+9}, v{Y+4+w}, v{Y+12+w}")
        A("s_mov_b32 vcc_lo, 0xaaaaaaaa")
        A("s_mov_b32 vcc_hi, 0xaaaaaaaa")
        A("v_mov_b32 v5, s46")
        A(f"v_mov_b32 v{G+4}, s47")
        A(f"v_mov_b32 v{G+2}, s48")
        A(f"v_mov_b32 v{G+3}, s49")
        A(f"v_or_b32 v{G}, s46, v{MRED}")
        A(f"v_cndmask_b32 v5, v5, v{G+2}, vcc")
        A(f"v_cndmask_b32 v7, v{G+4}, v{G+3}, vcc")
        A(f"v_and_or_b32 v{G+1}, v{Y+9}, s50, v{G+4}")
        A("s_mov_b64 exec, 1")
        A(f"global_store_dwordx4 v{Q+7}, v[{G}:{G+3}], s[20:21] sc1")
        A("s_mov_b64 exec, -1")
    issued = 0
    idx = {}
    consumed = set()
    done = 0
    kq = 0
    fix = 0
    sm = -2
    nv = 64
    state = {"setup": False, "non": None, "atom": None, "el3": False, "tree": None, "treed": False}
    seen_t = set()
    def dep_at(n):
        if opts.dep2 and 64 + DEP <= n < 64 + DEP + 20: return opts.dep2
        if opts.dep0 and n < 12: return opts.dep0
        if opts.dep3 and n >= opts.dep3at: return opts.dep3
        return DEP
    if opts.qat < 0:
        for x in range(2):
            A(f"global_load_dwordx4 v[{Q+4*x}:{Q+4*x+3}], v7, s[4:5] offset:{128*x}")
        issued += 2; qpos = issued
    for n in range(128 + 1):
        if n < 128:
            d = dep_at(n)
            if n >= d:
                k = issued - 1 - idx[n - d]
                A(f"s_waitcnt vmcnt({k})")
                done = max(done, issued - k)
            if n == d and opts.amp == "first": A("s_memrealtime s[76:77]")
            t, i = KSEQ[n] if n < 64 else VSEQ[n - 64]
            soff = "s25" if t == 0 else ("s26", "s90", "s91", "s92")[t % (KG if n < 64 else VG)]
            if t and (n >= 64, t) not in seen_t:
                A(f"s_add_u32 {soff}, s25, 0x{toff(t):x}"); seen_t.add((n >= 64, t))
            assert n < RING or (n - RING) in consumed, n
            a = areg(n)
            if n < 64: A(f"buffer_load_dwordx4 a[{a}:{a+3}], v5, s[28:31], {soff} offen offset:{kimm(i)} nt")
            else: A(f"buffer_load_dwordx4 a[{a}:{a+3}], v6, s[32:35], {soff} offen offset:{(1024 if opts.kperm else 256)*i} nt")
            idx[n] = issued; issued += 1
            if n == opts.qat:
                for x in range(2):
                    A(f"global_load_dwordx4 v[{Q+4*x}:{Q+4*x+3}], v7, s[4:5] offset:{128*x}")
                issued += 2; qpos = issued
            if n == opts.tlbat and opts.tlb:
                A(f"v_mov_b32 v{E+1}, s25")
                A(f"v_xor_b32 v{E+2}, 0x400000, v{E+1}")
                A(f"v_mov_b32 v{E+3}, 0x100000")
                A("s_mov_b64 exec, 1")
                if opts.tlb & 1: A(f"global_load_dword v{E+4}, v{E+2}, s[6:7] nt"); issued += 1
                if opts.tlb & 2: A(f"global_load_dword v{E+4}, v{E+1}, s[8:9] nt"); issued += 1
                if opts.tlb & 4: A(f"global_load_dword v{E+4}, v{E+2}, s[8:9] nt"); issued += 1
                if opts.tlb & 8: A(f"global_load_dword v{E+4}, v{E+3}, s[20:21] nt"); issued += 1
                A("s_mov_b64 exec, -1")
            if n == 2 and opts.split2:
                A("s_load_dwordx8 s[8:15], s[0:1], 16")
                A("s_load_dwordx4 s[16:19], s[0:1], 48")
                A("s_load_dwordx2 s[20:21], s[0:1], 64")
            if n == max(opts.qat, dep_at(0) - 1):
                if opts.split2: A("s_waitcnt lgkmcnt(0)")
                A(f"v_mov_b32 v{E}, 0x{REF:x}")
                A(f"v_mov_b32 v{E+5}, 1")
                A(f"v_mov_b32 v{E+6}, 0")
                A(f"v_mov_b32 v{E+7}, 0")
                elect(1)
                masks_block()
            if n == 8 and opts.amp:
                A("s_cmp_lt_u32 s2, 8")
                A("s_cselect_b32 s82, s24, 1")
                A("s_cmp_lg_u32 s82, 0")
                A("s_cbranch_scc1 L_noamp")
                A("s_lshl_b32 s82, s2, 2")
                A("s_add_u32 s82, s82, 128")
                A("v_mov_b32 v120, s82")
                A("v_mov_b32 v121, s80")
                A("s_mov_b64 exec, 1")
                A("global_store_dword v120, v121, s[18:19] sc1")
                A("s_mov_b64 exec, -1")
                A("L_noamp:")
            if n == 16:
                elect(2)
            if n == 24:
                issued += role_block(); state["tree"] = issued
            if not opts.latetree and state["tree"] is not None and not state["treed"] and done >= state["tree"]:
                treeblock(); state["treed"] = True
            if n == 127 and opts.latetree == 1:
                tree_loads(); issued += 4; state["treed"] = True
            if opts.latetree == 2:
                if n == 26 and opts.spf:
                    A("s_cmp_lt_u32 s23, 24")
                    A("s_cbranch_scc1 L_nopf")
                    A("s_load_dword s90, s[4:5], s42")
                    A("s_load_dword s91, s[10:11], s43")
                    A("s_add_u32 s27, s43, s56")
                    A("s_load_dword s92, s[12:13], s27")
                    A("s_load_dword s93, s[14:15], 0")
                    A("s_add_u32 s27, s42, 128")
                    A("s_load_dword s94, s[4:5], s27")
                    A("s_add_u32 s27, s43, 128")
                    A("s_load_dword s95, s[10:11], s27")
                    A("L_nopf:")
                if n == opts.treeat:
                    A("s_cmp_ge_u32 s23, 24")
                    A("s_cselect_b64 exec, -1, 0")
                    tree_loads(); issued += 4
                    if opts.otouch:
                        A(f"global_load_ushort v{E+1}, v23, s[16:17]"); issued += 1
                    state["tree2"] = issued
                    A("s_mov_b64 exec, -1")
                elif "tree2" in state and not state["treed"] and done >= state["tree2"]:
                    treeblock(); state["treed"] = True
        else:
            rendezvous()
        if kq < 16 and all(KPOS[(kq, i)] in idx and done > idx[KPOS[(kq, i)]] for i in range(4)) and done >= qpos:
            qk(kq)
            for i in range(4): consumed.add(KPOS[(kq, i)])
            kq += 1
            if kq >= 2:
                if kq == 2: A("s_nop 3")
                fixup(kq - 2); fix = kq - 1
        elif kq == 16 and fix == 15:
            fixup(15); fix = 16
            maxblock(); sm = 0
        elif fix == 16:
            if sm < 16:
                softmax(sm); sm += 1
                if sm == 16:
                    if opts.snon:
                        A(f"s_load_dwordx2 s[38:39], s[18:19], 0 {opts.sglc}")
                        state["non"] = 0
                    else:
                        A(f"global_load_dwordx2 v[{NON}:{NON+1}], v{NON}, s[18:19] sc1")
                        issued += 1; state["non"] = issued
            elif not state["setup"]:
                setup(); state["setup"] = True
            while nv in idx and done > idx[nv] and VSEQ[nv - 64][0] < sm:
                pv(nv); consumed.add(nv); nv += 1
    assert state["setup"] and state["treed"] and done >= state["non"]
    while nv < 128:
        A(f"s_waitcnt vmcnt({issued - 1 - idx[nv]})")
        pv(nv); nv += 1
    stamp(2)
    A("s_cmp_lt_u32 s23, 24")
    A("s_nop 5")
    for j in range(4):
        A(f"v_pk_mul_f32 v[{O+2*j}:{O+2*j+1}], v[{O+2*j}:{O+2*j+1}], v[0:1] op_sel_hi:[1,0]")
        if j == 1: A(f"ds_write_b128 v{Q+2}, v[{O}:{O+3}]")
    A(f"ds_write_b128 v{Q+2}, v[{O+4}:{O+7}] offset:{HI}")
    A("s_waitcnt lgkmcnt(0)")
    A("s_barrier")
    for j in range(4):
        A(f"ds_read_b64 v[{T+2*j}:{T+2*j+1}], v{Q+3} offset:{SRC*j}")
    A("s_waitcnt lgkmcnt(2)")
    A(f"v_pk_add_f32 v[{T}:{T+1}], v[{T}:{T+1}], v[{T+2}:{T+3}]")
    A("s_waitcnt lgkmcnt(0)")
    A(f"v_pk_add_f32 v[{T+4}:{T+5}], v[{T+4}:{T+5}], v[{T+6}:{T+7}]")
    A(f"v_pk_add_f32 v[{T}:{T+1}], v[{T}:{T+1}], v[{T+4}:{T+5}]")
    A(f"v_and_or_b32 v{T}, v{T}, s50, v5")
    A(f"v_and_or_b32 v{T+1}, v{T+1}, s50, v7")
    A(f"global_store_dwordx2 v{Q+6}, v[{T}:{T+1}], s[20:21] {opts.pmod}")
    stamp(3)
    A("s_cbranch_scc1 L_fin")
    P, Yv = 96, 112
    masks = ["s[58:59]", "s[60:61]", "s[62:63]"]
    W0 = T + 2
    M, Lr, F, TM, TT2 = T + 8, T + 9, T + 12, T + 11, T + 10
    acc = T + 16
    def poll_issue(js, first):
        for j in js:
            if not first: A(f"s_mov_b64 exec, {masks[j]}")
            if j == 0: A(f"global_load_dwordx4 v[{P}:{P+3}], v{Q+4}, s[20:21] sc1")
            else: A(f"global_load_dwordx4 v[{P+4*j}:{P+4*j+3}], v16, s[20:21] offset:{1024*(j-1)} sc1")
        if not first: A("s_mov_b64 exec, -1")
    def poll_check(j):
        A(f"s_waitcnt vmcnt({2 - j})")
        for e in range(4):
            A(f"v_xor_b32 v{Yv+4*j+e}, s{46+e}, v{P+4*j+e}")
            if j == 0 and e == 1: A(f"v_readfirstlane_b32 s57, v{Yv}")
        A(f"v_or3_b32 v{W0}, v{Yv+4*j}, v{Yv+4*j+1}, v{Yv+4*j+2}")
        A(f"v_bitop3_b32 v{W0}, v{W0}, v{Yv+4*j+3}, s44 bitop3:0xa8   ; (a | b) & mask")
        A(f"v_cmp_ne_u32 {masks[j]}, 0, v{W0}")
    poll_issue((0, 1, 2), True)
    A(f"s_mov_b32 s51, {opts.spin}")
    A("L_pollA:")
    poll_check(0)
    A(f"v_subrev_f32 v{F}, s57, v{Yv}")
    A(f"v_subrev_f32 v{FT}, s57, v22")
    A("s_cmp_lg_u64 s[58:59], 0")
    A("s_cbranch_scc1 L_retryA")
    A("L_goA:")
    A(f"v_max_f32 v{M}, v{F}, v{FT}")
    A(f"v_exp_f32 v{FT}, v{FT}")
    A(f"v_exp_f32 v{F}, v{F}")
    A(f"v_cmp_lt_f32 vcc, 0x41800000, v{M}")
    A(f"v_mul_f32 v{Lr}, v{F}, v{Yv+1}")
    A("s_cbranch_vccnz L_slow")
    A("L_back4:")
    A(f"v_mul_f32 v{TT2}, v{FT}, v18         ; tree term")
    for mod in ("quad_perm:[1,0,3,2]", "row_ror:4", "row_ror:8"):
        A(f"v_add_f32_dpp v{Lr}, v{Lr}, v{Lr} {mod} {D}")
        if mod != "row_ror:8": A("s_nop 1")
    for sw in ("v_permlane16_swap_b32", "v_permlane32_swap_b32"):
        A(f"v_mov_b32 v{TM}, v{Lr}")
        A("s_nop 1")
        A(f"{sw} v{Lr}, v{TM}")
        A(f"v_add_f32 v{Lr}, v{Lr}, v{TM}")
    A(f"v_add_f32 v{Lr}, v{Lr}, v{FT}")
    A(f"v_rcp_f32 v{Lr}, v{Lr}")
    A("L_pollB:")
    poll_check(1)
    poll_check(2)
    for e in range(4): A(f"v_mul_f32_dpp v{acc+e}, v{F}, v{Yv+4+e} quad_perm:[0,0,0,0] {D}")
    A("s_or_b64 s[52:53], s[60:61], s[62:63]")
    A("s_cbranch_scc1 L_retryB")
    A("L_go:")
    stamp(4)
    if opts.stamps:
        A(f"s_sub_u32 s74, {opts.spin+1}, s51")
    for e in range(4): A(f"v_fmac_f32_dpp v{acc+e}, v{F}, v{Yv+8+e} quad_perm:[1,1,1,1] {D}")
    A("s_nop 0")
    A(f"v_permlane16_swap_b32 v{acc}, v{acc+1}")
    A(f"v_permlane16_swap_b32 v{acc+2}, v{acc+3}")
    A(f"v_add_f32 v{acc}, v{acc}, v{acc+1}")
    A(f"v_add_f32 v{acc+2}, v{acc+2}, v{acc+3}")
    A("s_nop 1")
    A(f"v_permlane32_swap_b32 v{acc}, v{acc+2}")
    A(f"v_add_f32 v{acc}, v{acc}, v{acc+2}")
    A("s_nop 1")
    A(f"v_add_f32_dpp v{acc}, v{acc}, v{acc} row_ror:4 {D}")
    A("s_nop 1")
    A(f"v_add_f32_dpp v{acc}, v{acc}, v{acc} row_ror:8 {D}")
    A(f"v_add_f32 v{acc}, v{acc}, v{TT2}")
    A(f"v_mul_f32 v{acc}, v{Lr}, v{acc}")
    A("s_mov_b32 exec_lo, 0x000f000f")
    A("s_mov_b32 exec_hi, 0x000f000f")
    A(f"v_cvt_pk_bf16_f32 v{acc}, v{acc}, v{acc}")
    A(f"global_store_short v23, v{acc}, s[16:17] {opts.omod}")
    stamp(7)
    if opts.amp:
        A("s_memrealtime s[82:83]")
        if opts.amp == "ack":
            A("s_waitcnt vmcnt(0)")
            A("s_memrealtime s[88:89]")
        A("s_mov_b64 exec, -1")
        A("v_and_b32 v120, 7, v1")
        A("v_lshl_add_u32 v120, v120, 2, 64")
        A("v_add_u32 v120, 64, v120")
        A("global_load_dword v121, v120, s[18:19] sc1")
        A("s_waitcnt vmcnt(0) lgkmcnt(0)")
        for k in range(8): A(f"v_readlane_b32 s{4+k}, v121, {k}")
        A("s_min_u32 s84, s4, s5")
        for k in range(2, 8): A(f"s_min_u32 s84, s84, s{4+k}")
        A("s_max_u32 s85, s4, s5")
        for k in range(2, 8): A(f"s_max_u32 s85, s85, s{4+k}")
        if opts.amp == "T": A("s_sub_u32 s85, s82, s84"); A("s_sub_i32 s85, s85, 1500")
        elif opts.amp == "skew": A("s_sub_u32 s85, s85, s84")
        elif opts.amp == "zero": A("s_mov_b32 s85, 0")
        elif opts.amp == "ack": A("s_sub_u32 s85, s88, s82")
        elif opts.amp == "karg": A("s_sub_u32 s85, s78, s80")
        elif opts.amp == "first": A("s_sub_u32 s85, s76, s80")
        else: A(f"s_sub_u32 s85, s{4+int(opts.amp)}, s84")
        A("s_max_i32 s85, s85, 0")
        A("s_min_i32 s85, s85, 3000")
        A(f"s_lshl_b32 s85, s85, {opts.ampsh}")
        A("L_spin:")
        A("s_memrealtime s[86:87]")
        A("s_waitcnt lgkmcnt(0)")
        A("s_sub_u32 s86, s86, s82")
        A("s_cmp_lt_u32 s86, s85")
        A("s_cbranch_scc1 L_spin")
    A("L_fin:")
    if opts.stamps:
        A(f"s_cmp_lg_u32 s24, {opts.stampwave}")
        A("s_cbranch_scc1 L_end")
        A("s_mov_b64 exec, 1")
        A("s_lshl_b32 s26, s2, 6")
        A("s_add_u32 s26, s26, 0x200000")
        A("v_mov_b32 v0, s26")
        for j in range(4):
            for e in range(4):
                A(f"v_mov_b32 v{8+e}, s{64+4*j+e}")
            A(f"global_store_dwordx4 v0, v[8:11], s[20:21] offset:{16*j}")
            A("s_nop 1")
    A("L_end:")
    A("s_endpgm")
    def el1():
        A(f"global_load_dword v{E+4}, v{E}, s[20:21] sc1")
    def el2(ret):
        A(f"v_add_u32 v{E+4}, 1, v{E+4}")
        if ret: A(f"global_atomic_cmpswap_x2 v[{E+2}:{E+3}], v{E+6}, v[{E+4}:{E+7}], s[18:19] sc0 sc1")
        else: A(f"global_atomic_cmpswap_x2 v{E+6}, v[{E+4}:{E+7}], s[18:19] sc1")
    for n, f in ((1, el1), (2, lambda: el2(False))):
        A(f"L_el{n}:")
        A("s_mov_b64 exec, 1")
        f()
        A("s_mov_b64 exec, -1")
        A(f"s_branch L_el{n}b")
    A("L_late:")
    A("s_mov_b64 exec, 1")
    if opts.cntfb:
        A(f"v_mov_b32 v{E+2}, 64")
        A(f"global_atomic_add v{E+2}, v{E+5}, s[18:19] sc1")
    el1(); A("s_waitcnt vmcnt(0)")
    el2(True); A("s_waitcnt vmcnt(0)")
    A(f"v_cmp_eq_u32 vcc, 0, v{E+3}")
    A("s_nop 1")
    A(f"v_cndmask_b32 v{E+2}, v{E+2}, v{E+4}, vcc")
    if opts.snon: A("s_nop 0"); A(f"v_readfirstlane_b32 s45, v{E+2}")
    else: A(f"v_mov_b32 v{NON}, v{E+2}")
    A("s_mov_b64 exec, -1")
    A("s_branch L_lateb")
    A("L_retryA:")
    A("s_sub_u32 s51, s51, 1")
    A("s_cbranch_scc1 L_goA")
    poll_check(1)
    poll_check(2)
    poll_issue((0, 1, 2), False)
    A("s_branch L_pollA")
    A("L_retryB:")
    A("s_sub_u32 s51, s51, 1")
    A("s_cbranch_scc1 L_go")
    poll_issue((1, 2), False)
    A("s_branch L_pollB")
    A("L_slow:")
    A(f"v_max_f32 v{M}, v{Yv}, v22")
    A("s_nop 1")
    for mod in ("quad_perm:[1,0,3,2]", "row_ror:4", "row_ror:8"):
        A(f"v_max_f32_dpp v{M}, v{M}, v{M} {mod} {D}")
        A("s_nop 1")
    for sw in ("v_permlane16_swap_b32", "v_permlane32_swap_b32"):
        A(f"v_mov_b32 v{TM}, v{M}")
        A("s_nop 1")
        A(f"{sw} v{M}, v{TM}")
        A(f"v_max_f32 v{M}, v{M}, v{TM}")
    A(f"v_sub_f32 v{F}, v{Yv}, v{M}")
    A(f"v_sub_f32 v{FT}, v22, v{M}")
    A(f"v_exp_f32 v{F}, v{F}")
    A(f"v_exp_f32 v{FT}, v{FT}")
    A("s_nop 0")
    A(f"v_mul_f32 v{Lr}, v{F}, v{Yv+1}")
    A("s_branch L_back4")
    A('.section .rodata,"a"')
    A(".p2align 6")
    A(f".amdhsa_kernel {NAME}_kernel")
    A(f"  .amdhsa_next_free_vgpr {256 + 4 * RING}")
    A("  .amdhsa_next_free_sgpr 96")
    A("  .amdhsa_accum_offset 256")
    A("  .amdhsa_group_segment_fixed_size 0")
    A("  .amdhsa_kernarg_size 72")
    A("  .amdhsa_user_sgpr_count 2")
    A("  .amdhsa_user_sgpr_kernarg_segment_ptr 1")
    A("  .amdhsa_system_sgpr_workgroup_id_x 1")
    A(".end_amdhsa_kernel")
    out = []
    for l in L:
        if l.startswith((";", ".", "L_")) or l.endswith(":") or l.startswith("  ."):
            out.append(l)
        else:
            out.append("    " + l.rstrip())
    return "\n".join(out) + "\n"

if __name__ == "__main__":
    ap = argparse.ArgumentParser()
    ap.add_argument("-o", default="/dev/stdout")
    ap.add_argument("--wb", default="12,13")
    ap.add_argument("--tb", default="18,16,22,17")
    ap.add_argument("--sb", default="14,15,21,20,19")
    ap.add_argument("--dep", type=int, default=6)
    ap.add_argument("--dep2", type=int, default=0)
    ap.add_argument("--dep0", type=int, default=0)
    ap.add_argument("--latetree", type=int, default=2)
    ap.add_argument("--snon", type=int, default=0)
    ap.add_argument("--sglc", default="")
    ap.add_argument("--cntfb", type=int, default=0)
    ap.add_argument("--tlb", type=int, default=0)
    ap.add_argument("--tlbat", type=int, default=5)
    ap.add_argument("--dual", type=lambda x: int(x, 0), default=0)
    ap.add_argument("--gap", type=int, default=5)
    ap.add_argument("--treeat", type=int, default=100)
    ap.add_argument("--spf", type=int, default=0)
    ap.add_argument("--split2", type=int, default=1)
    ap.add_argument("--noelect", type=int, default=0)
    ap.add_argument("--amp", default="")
    ap.add_argument("--ampsh", type=int, default=4)
    ap.add_argument("--wait0", type=int, default=0)
    ap.add_argument("--thr", type=int, default=0)
    ap.add_argument("--psleep", type=int, default=0)
    ap.add_argument("--sthr", type=int, default=16)
    ap.add_argument("--kperm", type=int, default=0)
    ap.add_argument("--kord", default="0,2,1,3")
    ap.add_argument("--vord", default="0,1,2,3")
    ap.add_argument("--dep3", type=int, default=0)
    ap.add_argument("--dep3at", type=int, default=112)
    ap.add_argument("--omod", default="")
    ap.add_argument("--pmod", default="sc1")
    ap.add_argument("--otouch", type=int, default=1)
    ap.add_argument("--ring", type=int, default=16)
    ap.add_argument("--qat", type=int, default=1)
    ap.add_argument("--hshift", type=int, default=5)
    ap.add_argument("--hmask", type=int, default=6)
    ap.add_argument("--cx", type=int, default=1)
    ap.add_argument("--ackwait", type=int, default=0)
    ap.add_argument("--spin", type=int, default=1000000)
    ap.add_argument("--stamps", type=int, default=0)
    ap.add_argument("--stampwave", type=int, default=0)
    o = ap.parse_args()
    open(o.o, "w").write(gen(o))
```
